```python
import torch

def _softmax(x, axis=-1):
    return torch.softmax(x, dim=axis)
def _gelu(x):
    return torch.nn.functional.gelu(x, approximate="tanh")
def _silu(x):
    return torch.nn.functional.silu(x)
def _sigmoid(x):
    return torch.sigmoid(x)
def _layernorm(x, axis=-1, eps=1e-5):
    m = x.mean(dim=axis, keepdim=True)
    v = x.var(dim=axis, keepdim=True, unbiased=False)
    return (x - m) / torch.sqrt(v + eps)
def _scatter_add(tgt, idx, src, axis=0):
    return tgt.clone().index_add_(axis, idx, src)
def _segment_sum(src, seg, n):
    out = torch.zeros((n,) + src.shape[1:], dtype=src.dtype)
    return out.index_add_(0, seg, src)
def _pad(x, pw):
    flat = tuple(v for pair in reversed(pw) for v in pair)
    return torch.nn.functional.pad(x, flat)

kernel_name = 'gated_mix__ssm_conv_s4__mixer_channel_mlp__prompt'

def setup_inputs():

    _w = (lambda a: (lambda t: t.to(torch.bfloat16) if t.is_floating_point() else t)(torch.as_tensor(a)))
    def _A_setup():
        B, L, D, N = 1, 2048, 512, 128
        A_re = -(lambda _x: torch.exp(torch.as_tensor(_x)))((lambda *s: torch.randn(*s, dtype=torch.bfloat16) * 3.2)(D, N))
        A_im = torch.pi * (lambda *s: torch.randn(*s, dtype=torch.bfloat16) * 0.1)(D, N)
        B_re = (lambda *s: torch.randn(*s, dtype=torch.bfloat16) * 0.2)(D, N)
        B_im = (lambda *s: torch.randn(*s, dtype=torch.bfloat16) * 0.2)(D, N)
        C_re = (lambda *s: torch.randn(*s, dtype=torch.bfloat16) * 0.2)(D, N)
        C_im = (lambda *s: torch.randn(*s, dtype=torch.bfloat16) * 0.2)(D, N)
        log_dt = (lambda *s: torch.randn(*s, dtype=torch.bfloat16) * 0.1)(D) * 0.5 - 4.0
        Dskip = (lambda *s: torch.randn(*s, dtype=torch.bfloat16) * 0.1)(D)
        return {
            "u": _w((lambda *s: torch.randn(*s, dtype=torch.bfloat16) * 0.05)(B, L, D)),
            "A_re": _w(A_re),
            "A_im": _w(A_im),
            "B_re": _w(B_re),
            "B_im": _w(B_im),
            "C_re": _w(C_re),
            "C_im": _w(C_im),
            "log_dt": _w(log_dt),
            "Dskip": _w(Dskip),
        }
    _A_in = _A_setup()

    def _B_setup():
        B, S, D, F = 1, 2048, 512, 1792
        return {
            "x": _w((lambda *s: torch.randn(*s, dtype=torch.bfloat16) * 0.05)(B, S, D)),
            "w1": _w((lambda *s: torch.randn(*s, dtype=torch.bfloat16) * 0.8)(D, F) * (D ** -0.5)),
            "b1": _w((lambda *s: torch.randn(*s, dtype=torch.bfloat16) * 0.2)(F)),
            "w2": _w((lambda *s: torch.randn(*s, dtype=torch.bfloat16) * 0.05)(F, D) * (F ** -0.5)),
            "b2": _w((lambda *s: torch.randn(*s, dtype=torch.bfloat16) * 0.05)(D)),
        }
    _B_in = _B_setup()

    return {
        "A_u": _A_in["u"],
        "A_A_re": _A_in["A_re"],
        "A_A_im": _A_in["A_im"],
        "A_B_re": _A_in["B_re"],
        "A_B_im": _A_in["B_im"],
        "A_C_re": _A_in["C_re"],
        "A_C_im": _A_in["C_im"],
        "A_log_dt": _A_in["log_dt"],
        "A_Dskip": _A_in["Dskip"],
        "B_x": _B_in["x"],
        "B_w1": _B_in["w1"],
        "B_b1": _B_in["b1"],
        "B_w2": _B_in["w2"],
        "B_b2": _B_in["b2"],
        "gate_w": _w((lambda *s: torch.randn(*s, dtype=torch.bfloat16) * 0.05)(512) * 16.0),
    }

def reference(A_u, A_A_re, A_A_im, A_B_re, A_B_im, A_C_re, A_C_im, A_log_dt, A_Dskip, B_x, B_w1, B_b1, B_w2, B_b2, gate_w):
    def _A_ref(u, A_re, A_im, B_re, B_im, C_re, C_im, log_dt, Dskip):
        Bsz, L, D = u.shape
        dt = torch.exp(log_dt)[:, None]
        A = A_re + 1j * A_im
        Bc = B_re + 1j * B_im
        Cc = C_re + 1j * C_im
        logdA = dt * A
        dB = dt * Bc
        l = (lambda x, dt: x.to(dt))(torch.arange(L), A_re.dtype)
        P = torch.exp(logdA[:, :, None] * l[None, None, :])
        K = torch.einsum("dn,dnl,dn->dl", Cc, P, dB).real
        L2 = 2 * L
        Kp = _pad(K, ((0, 0), (0, L)))
        up = (lambda x, *d: x.permute(*d))(u, 0, 2, 1)
        up = _pad(up, ((0, 0), (0, 0), (0, L)))
        Kf = (lambda x, axes=(-2,-1): torch.fft.rfft2(x.float(), dim=axes))(Kp[:, None, :], axes=(-2, -1))
        Uf = (lambda x, axes=(-2,-1): torch.fft.rfft2(x.float(), dim=axes))(up[:, :, None, :], axes=(-2, -1))
        Yf = Uf * Kf[None, :, :, :]
        y = (lambda x, s, axes=(-2,-1): torch.fft.irfft2(x, s=s, dim=axes).to(torch.bfloat16))(Yf, (1, L2), axes=(-2, -1))[:, :, 0, :L]
        y = (lambda x, *d: x.permute(*d))(y, 0, 2, 1) + u * Dskip[None, None, :]
        return y

    def _B_ref(x, w1, b1, w2, b2):
        y = _layernorm(x, axis=-1)
        h = _gelu(torch.einsum("bsd,df->bsf", y, w1) + b1)
        return torch.einsum("bsf,fd->bsd", h, w2) + b2

    x = A_u
    g = _sigmoid((x * gate_w).sum(-1, keepdims=True))
    a = _A_ref(x, A_A_re, A_A_im, A_B_re, A_B_im, A_C_re, A_C_im, A_log_dt, A_Dskip)
    b = _B_ref(x, B_w1, B_b1, B_w2, B_b2)
    return g * a + (1 - g) * b
```

```python
import re

REG_RE = re.compile(r"(?<![\w.])(-?)(?:abs\()?([vas])(?:(\d+)|\[(\d+):(\d+)\])")

TRANS = ("v_exp_f32", "v_log_f32", "v_rcp_f32", "v_rsq_f32", "v_sqrt_f32", "v_sin_f32", "v_cos_f32")


def regs_of(tok):
    out = []
    for m in REG_RE.finditer(tok):
        kind = m.group(2)
        if m.group(3) is not None:
            out.append((kind, int(m.group(3))))
        else:
            out += [(kind, i) for i in range(int(m.group(4)), int(m.group(5)) + 1)]
    t = tok.strip()
    if t in ("vcc", "vcc_lo", "vcc_hi"):
        out.append(("x", "vcc"))
    if t in ("exec",):
        out.append(("x", "exec"))
    if t == "m0":
        out.append(("x", "m0"))
    return out


def split_ops(s):
    ops, depth, cur = [], 0, ""
    for ch in s:
        if ch in "[(":
            depth += 1
        if ch in "])":
            depth -= 1
        if ch == "," and depth == 0:
            ops.append(cur.strip())
            cur = ""
        else:
            cur += ch
    if cur.strip():
        ops.append(cur.strip())
    return ops


class Ins:
    __slots__ = ("text", "mn", "dst", "src", "cls", "passes", "srcC", "isDPP")

    def __init__(self, text):
        self.text = text
        t = text.strip()
        parts = t.split(None, 1)
        self.mn = mn = parts[0]
        rest = parts[1] if len(parts) > 1 else ""
        ops = split_ops(rest)
        if ops:
            last = ops[-1].split()
            ops[-1] = last[0] if last else ""
            mods = " ".join(last[1:])
        else:
            mods = ""
        self.dst, self.src, self.passes, self.srcC = [], [], 0, []
        self.isDPP = "_dpp" in mn or "row_" in mods or "quad_perm" in mods
        R = [regs_of(o) for o in ops]
        flat = lambda L: [r for x in L for r in x]
        if mn.startswith("v_mfma"):
            self.cls = "mfma"
            self.passes = 8 if "32x32" in mn else 4
            self.dst = R[0]
            self.src = flat(R[1:])
            self.srcC = R[3] if len(R) > 3 else []
        elif mn.startswith("v_cmp"):
            self.cls = "valu"
            self.dst = R[0]
            self.src = flat(R[1:])
            if mn.startswith("v_cmpx"):
                self.dst = self.dst + [("x", "exec")]
        elif mn.startswith("v_readfirstlane") or mn.startswith("v_readlane"):
            self.cls = "valu"
            self.dst = R[0]
            self.src = flat(R[1:])
        elif mn.startswith("v_permlane") and "swap" in mn:
            self.cls = "valu"
            self.dst = R[0] + R[1]
            self.src = R[0] + R[1]
        elif mn.startswith("v_"):
            self.cls = "valu"
            self.dst = R[0]
            self.src = flat(R[1:])
            if mn.startswith(("v_add_co", "v_sub_co", "v_addc_co", "v_subb_co")):
                self.dst = R[0] + R[1]
                self.src = flat(R[2:])
            if mn.startswith(("v_fmac", "v_dot2c", "v_pk_fmac")) or "d16" in mn:
                self.src = self.src + R[0]
            if mn.startswith("v_cndmask") and len(ops) == 3:
                self.src = self.src + [("x", "vcc")]
        elif mn.startswith("ds_"):
            self.cls = "ds"
            if mn.startswith(("ds_read", "ds_bpermute", "ds_permute", "ds_swizzle")):
                self.dst = R[0]
                self.src = flat(R[1:])
                if "d16" in mn:
                    self.src = self.src + R[0]
            else:
                self.src = flat(R)
        elif mn.startswith(("buffer_", "global_")):
            self.cls = "vmem"
            is_lds = ("lds" in mods.split()) or ("_lds_" in mn) or (ops and ops[-1] == "lds")
            if "_load" in mn and not is_lds:
                self.dst = R[0]
                self.src = flat(R[1:])
            elif "atomic" in mn and "sc0" in mods:
                self.dst = R[0]
                self.src = flat(R[1:])
            else:
                self.src = flat(R)
            if is_lds:
                self.src = self.src + [("x", "m0")]
        elif mn.startswith("s_"):
            self.cls = "salu"
            if mn in ("s_waitcnt", "s_nop", "s_barrier", "s_endpgm", "s_branch", "s_sleep", "s_setprio") or mn.startswith("s_cbranch"):
                pass
            elif mn.startswith("s_cmp"):
                self.src = flat(R)
            elif "saveexec" in mn:
                self.dst = R[0] + [("x", "exec")]
                self.src = flat(R[1:]) + [("x", "exec")]
            else:
                self.dst = R[0] if R else []
                self.src = flat(R[1:])
        else:
            raise ValueError("unknown instruction: " + text)

    def states(self):
        if self.mn == "s_nop":
            return int(self.text.split()[1]) + 1
        return 1

    def wide_store(self):
        return self.cls == "vmem" and "store" in self.mn and self.mn.endswith(("x3", "x4"))


def need_gap(p, c):
    n = 0
    pd, cs, cd = set(p.dst), set(c.src), set(c.dst)
    vgpr = lambda S: {r for r in S if r[0] in "va"}
    sgpr = lambda S: {r for r in S if r[0] == "s" or r == ("x", "vcc")}
    if p.cls == "valu":
        w = vgpr(pd)
        if c.cls == "mfma" and w & cs:
            n = max(n, 2)
        if c.cls == "valu":
            if c.mn.startswith(("v_readfirstlane", "v_readlane")) and w & cs:
                n = max(n, 1)
            if c.mn.startswith("v_permlane") and w & cs:
                n = max(n, 2)
            if c.isDPP and w & cs:
                n = max(n, 2)
            if p.mn.replace("_e32", "").replace("_e64", "") in TRANS and w & cs:
                n = max(n, 1)
        ws = sgpr(pd)
        if ws:
            if c.cls == "valu" and ws & cs:
                n = max(n, 4 if c.mn.startswith(("v_readlane", "v_writelane")) else 2)
            if c.cls == "vmem" and ws & cs:
                n = max(n, 5)
            if c.cls == "salu" and ws & cs:
                n = max(n, 1)
        if ("x", "exec") in pd:
            if c.cls == "mfma":
                n = max(n, 4)
            if c.cls == "valu" and c.mn.startswith(("v_readlane", "v_readfirstlane", "v_permlane")):
                n = max(n, 4)
            if c.cls == "valu" and c.isDPP:
                n = max(n, 5)
    if p.cls == "mfma":
        d = vgpr(pd)
        far = {4: 8, 8: 12}[p.passes]
        if c.cls == "mfma":
            ab = set(c.src) - set(c.srcC)
            if d & ab:
                n = max(n, far)
            cC = set(c.srcC)
            if d & cC and not (cC == d and c.passes == p.passes):
                n = max(n, {4: 6, 8: 10}[p.passes])
            if d & cd and not (cC == d):
                n = max(n, far)
        elif c.cls in ("valu", "ds", "vmem"):
            if d & (cs | cd):
                n = max(n, far)
        if c.cls == "valu" and set(p.srcC) & vgpr(cd):
            n = max(n, {4: 3, 8: 7}[p.passes])
    if p.cls == "salu" and ("x", "m0") in pd and ("x", "m0") in cs and c.cls in ("vmem", "ds"):
        n = max(n, 1)
    if p.wide_store() and c.cls in ("valu", "mfma", "ds", "vmem") and vgpr(set(p.src)) & vgpr(cd):
        n = max(n, 2)
    return n


class Asm:
    def __init__(self):
        self.lines = []
        self.hist = []
        self.vm_issued = 0
        self.lg_issued = 0
        self.nops_added = 0
        self.icount = 0

    def raw(self, text):
        self.lines.append(text)

    def comment(self, text):
        self.lines.append("  ; " + text)

    def label(self, name):
        self.lines.append(name + ":")

    def I(self, text, count=True):
        ins = Ins(text)
        need = 0
        dist = 0
        for p in reversed(self.hist):
            g = need_gap(p, ins)
            if g - dist > need:
                need = g - dist
            dist += p.states()
            if dist >= 13:
                break
        while need > 0:
            k = min(need, 16)
            nop = Ins(f"s_nop {k-1}")
            self.lines.append(f"  s_nop {k-1}")
            self.hist.append(nop)
            self.nops_added += 1
            need -= k
        self.lines.append("  " + text)
        self.hist.append(ins)
        self.hist = self.hist[-16:]
        self.icount += 1
        tag = None
        if ins.cls == "vmem" and count:
            self.vm_issued += 1
            tag = ("vm", self.vm_issued)
        elif ins.cls == "ds":
            self.lg_issued += 1
            tag = ("lg", self.lg_issued)
        return tag

    def __call__(self, text, count=True):
        return self.I(text, count)

    def pad(self, n):
        while n > 0:
            k = min(n, 16)
            self.I(f"s_nop {k-1}")
            n -= k

    def wait_vm(self, tag=None):
        n = 0 if tag is None else self.vm_issued - tag[1]
        assert n >= 0
        self.I(f"s_waitcnt vmcnt({min(n, 63)})")

    def wait_lg(self, tag=None):
        n = 0 if tag is None else self.lg_issued - tag[1]
        assert n >= 0
        self.I(f"s_waitcnt lgkmcnt({min(n, 15)})")

    def wait_both0(self):
        self.I("s_waitcnt vmcnt(0) lgkmcnt(0)")

    def text(self):
        return "\n".join(self.lines) + "\n"


def vr(base, n=1):
    return f"v{base}" if n == 1 else f"v[{base}:{base+n-1}]"


def ar(base, n=1):
    return f"a{base}" if n == 1 else f"a[{base}:{base+n-1}]"


def sr(base, n=1):
    return f"s{base}" if n == 1 else f"s[{base}:{base+n-1}]"
```

```python
import math
from asmlib import vr, ar, sr
import gen as G
from gen import *

LOG2E = math.log2(math.e)
SPIN_MAX = 400000


def cmul(a, dst, p, w, tmp):
    a(f"v_pk_mul_f32 {vr(tmp,2)}, {vr(p,2)}, {vr(w,2)} op_sel:[0,0] op_sel_hi:[1,0]")
    a(f"v_pk_fma_f32 {vr(dst,2)}, {vr(p,2)}, {vr(w,2)}, {vr(tmp,2)} op_sel:[1,1,0] op_sel_hi:[0,1,1] neg_lo:[0,1,0]")


def get_nonce(self, t0):
    a = self.a
    a(f"s_cmp_lg_u32 {sr(S_WAVE)}, 0")
    a("s_cbranch_scc1 L_nonce_done")
    a(f"v_mov_b32 v{t0+2}, 0")
    a(f"s_mov_b32 {sr(S_SPIN)}, {SPIN_MAX}")
    a.label("L_nonce")
    a(f"global_load_dwordx2 {vr(t0,2)}, v{t0+2}, {sr(P_DBG,2)} sc1", count=False)
    a("s_waitcnt vmcnt(0)")
    a(f"v_readfirstlane_b32 {sr(S_T0)}, v{t0+1}")
    a(f"s_sub_u32 {sr(S_SPIN)}, {sr(S_SPIN)}, 1")
    a(f"s_cmp_eq_u32 {sr(S_SPIN)}, 0")
    a("s_cbranch_scc1 L_nonce_got")
    a(f"s_cmp_eq_u32 {sr(S_T0)}, 1")
    a("s_cbranch_scc0 L_nonce")
    a.label("L_nonce_got")
    a(f"v_mov_b32 v{t0+2}, {L_NONCE}")
    a(f"ds_write_b32 v{t0+2}, v{t0}")
    a.lg_issued -= 1
    a.label("L_nonce_done")


def read_nonce(self, t0):
    a = self.a
    a(f"v_mov_b32 v{t0+2}, {L_NONCE}")
    a(f"ds_read_b32 v{t0}, v{t0+2}")
    a("s_waitcnt lgkmcnt(0)")
    a(f"v_readfirstlane_b32 {sr(S_NONCE)}, v{t0}")


def set_flag(self, name, voff_expr_fn, t0):
    a = self.a
    a(f"s_cmp_lg_u32 {sr(S_WAVE)}, 0")
    a(f"s_cbranch_scc1 L_noflag_{name}")
    voff_expr_fn()
    a(f"v_mov_b32 v{t0}, {sr(S_T0)}")
    a(f"v_mov_b32 v{t0+1}, {sr(S_NONCE)}")
    a(f"v_cmp_eq_u32 vcc, 0, v{V_L}")
    a(f"s_and_saveexec_b64 {sr(S_EX,2)}, vcc")
    a(f"buffer_store_dword v{t0+1}, v{t0}, {sr(SRD_WS,4)}, 0 offen sc1", count=False)
    a(f"s_mov_b64 exec, {sr(S_EX,2)}")
    a.label(f"L_noflag_{name}")


def poll_flags(self, name, vaddr, t0):
    a = self.a
    a(f"s_cmp_lg_u32 {sr(S_WAVE)}, 0")
    a(f"s_cbranch_scc1 L_polldone_{name}")
    a(f"s_mov_b32 {sr(S_SPIN)}, {SPIN_MAX}")
    a.label(f"L_poll_{name}")
    a(f"buffer_load_dword v{t0}, v{vaddr}, {sr(SRD_WS,4)}, 0 offen sc1", count=False)
    a("s_waitcnt vmcnt(0)")
    a(f"v_cmp_ne_u32 vcc, {sr(S_NONCE)}, v{t0}")
    a(f"s_sub_u32 {sr(S_SPIN)}, {sr(S_SPIN)}, 1")
    a(f"s_cmp_eq_u32 {sr(S_SPIN)}, 0")
    a(f"s_cbranch_scc1 L_polldone_{name}")
    a("s_cmp_lg_u64 vcc, 0")
    a(f"s_cbranch_scc1 L_poll_{name}")
    a.label(f"L_polldone_{name}")
    a("s_waitcnt lgkmcnt(0)")
    a("s_barrier")


def dump_lds(self, name, base, nbytes):
    if self.o.get("dump") != name:
        return
    a = self.a
    a("s_waitcnt vmcnt(0) lgkmcnt(0)")
    a("s_barrier")
    a(f"v_lshlrev_b32 v250, 4, v{V_TID}")
    a(f"s_mul_i32 {sr(S_T0)}, {sr(S_WG)}, 65536")
    a(f"s_add_u32 {sr(S_T0)}, {sr(S_T0)}, {WS_DUMP}")
    for off in range(0, nbytes, 4096):
        a(f"v_add_u32 v251, {base + off}, v250")
        a(f"ds_read_b128 v[244:247], v251")
        a("s_waitcnt lgkmcnt(0)")
        a(f"buffer_store_dwordx4 v[244:247], v250, {sr(SRD_WS,4)}, {sr(S_T0)} offen", count=False)
        a(f"s_add_u32 {sr(S_T0)}, {sr(S_T0)}, 4096")
        a("s_waitcnt vmcnt(0)")
    a("s_barrier")


def phase_b(self):
    a = self.a
    o = self.o
    R = 32
    DT, A2, BR = R, R + 1, R + 2
    W, W1, W2, W4, W8, VV = R + 4, R + 6, R + 8, R + 10, R + 12, R + 14
    P, Q, TMP, PK = R + 16, R + 18, R + 20, R + 22
    VADDR = R + 26
    for k in range(7):
        a(f"v_lshlrev_b32 v{V_KP+k}, 16, v{V_KP+k}")
    ARE, AIM, BRE, BIM, CRE, CIM, LDT = (V_KP + k for k in range(7))
    a(f"v_mul_f32 v{DT}, {f2u(LOG2E):#x}, v{LDT}")
    a(f"v_exp_f32 v{DT}, v{DT}")
    a(f"v_cvt_pk_bf16_f32 v{DT}, v{DT}, v{DT}")
    a(f"v_and_b32 v{DT}, 0xffff0000, v{DT}")
    a(f"v_mul_f32 v{A2}, v{DT}, v{ARE}")
    a(f"v_mul_f32 v{A2}, {f2u(LOG2E):#x}, v{A2}")
    a(f"v_mul_f32 v{BR}, v{DT}, v{AIM}")
    a(f"v_mul_f32 v{BR}, {f2u(1.0/(2*math.pi)):#x}, v{BR}")
    a(f"v_mul_f32 v{BRE}, v{DT}, v{BRE}")
    a(f"v_mul_f32 v{BIM}, v{DT}, v{BIM}")
    a(f"v_mul_f32 v{W}, v{CRE}, v{BRE}")
    a(f"v_fma_f32 v{W}, -v{CIM}, v{BIM}, v{W}")
    a(f"v_mul_f32 v{W+1}, v{CRE}, v{BIM}")
    a(f"v_fma_f32 v{W+1}, v{CIM}, v{BRE}, v{W+1}")
    for dst, t in ((W1, 1.0), (W8, 8.0), (VV, 256.0)):
        a(f"v_mul_f32 v{TMP}, {f2u(t):#x}, v{A2}")
        a(f"v_mul_f32 v{TMP+1}, {f2u(t):#x}, v{BR}")
        a(f"v_exp_f32 v{TMP}, v{TMP}")
        a(f"v_fract_f32 v{TMP+1}, v{TMP+1}")
        a(f"v_cos_f32 v{dst}, v{TMP+1}")
        a(f"v_sin_f32 v{dst+1}, v{TMP+1}")
        a(f"v_mul_f32 v{dst}, v{TMP}, v{dst}")
        a(f"v_mul_f32 v{dst+1}, v{TMP}, v{dst+1}")
    cmul(a, W2, W1, W1, TMP)
    cmul(a, W4, W2, W2, TMP)
    a(f"s_lshr_b32 {sr(S_T0)}, {sr(S_WAVE)}, 1")
    a(f"s_mul_i32 {sr(S_T0)}, {sr(S_T0)}, {32*TROW}")
    a(f"s_and_b32 {sr(S_T1)}, {sr(S_WAVE)}, 1")
    a(f"s_lshl_b32 {sr(S_T1)}, {sr(S_T1)}, 8")
    a(f"s_add_u32 {sr(S_T0)}, {sr(S_T0)}, {sr(S_T1)}")
    a(f"v_lshl_add_u32 v{VADDR}, v{V_L}, 2, {sr(S_T0)}")
    pkn = [0]

    def put(src, row, hi):
        pk = PK + (pkn[0] & 3)
        pkn[0] += 1
        neg = "-" if hi else ""
        a(f"v_cvt_pk_bf16_f32 v{pk}, v{src}, {neg}v{src+1}")
        a(f"ds_write_b32 v{VADDR}, v{pk} offset:{(L_HI if hi else L_LO) + row*TROW}")

    put(W, 0, True)
    cur, oth = W, P
    for i in range(1, 8):
        cmul(a, oth, cur, W1, TMP)
        put(oth, i, True)
        cur, oth = oth, (Q if oth == P else P)
    QQ = R + 28
    cmul(a, QQ, W, VV, TMP); put(QQ, 8, True)
    cmul(a, P, QQ, W2, TMP); put(P, 9, True)
    cmul(a, Q, P, W2, TMP); put(Q, 10, True)
    cmul(a, P, Q, W2, TMP); put(P, 11, True)
    QB = R + 30
    cmul(a, QB, QQ, VV, TMP); put(QB, 12, True)
    cmul(a, P, QB, W4, TMP); put(P, 13, True)
    cmul(a, QQ, QB, VV, TMP); put(QQ, 14, True)
    cmul(a, P, QQ, W4, TMP); put(P, 15, True)
    cur, oth = QQ, QB
    for row in range(16, 21):
        cmul(a, oth, cur, VV, TMP); put(oth, row, True)
        cur, oth = oth, cur
    a(f"v_mov_b32 v{P}, 1.0")
    a(f"v_mov_b32 v{P+1}, 0")
    put(P, 0, False)
    put(W8, 1, False)
    cur, oth = W8, P
    for j in range(2, 32):
        cmul(a, oth, cur, W8, TMP)
        put(oth, j, False)
        cur, oth = oth, (Q if oth == P else P)
    self.stamp("tables")

    get_nonce(self, R + 32)
    a("s_waitcnt vmcnt(0) lgkmcnt(0)")
    a("s_barrier")
    read_nonce(self, R + 32)

    def offA():
        a(f"s_lshl_b32 {sr(S_T0)}, {sr(S_RB)}, 4")
        a(f"s_add_u32 {sr(S_T0)}, {sr(S_T0)}, {sr(S_CB)}")
        a(f"s_lshl_b32 {sr(S_T0)}, {sr(S_T0)}, 5")
        a(f"s_add_u32 {sr(S_T0)}, {sr(S_T0)}, {WS_FLAGA}")
    set_flag(self, "A", offA, R + 32)
    self.stamp("flagA")

    FA, FB, D0, D1 = 64, 128, R + 4, R + 8
    VA_, VB_ = R + 12, R + 13
    a(f"s_lshr_b32 {sr(S_T0)}, {sr(S_WAVE)}, 1")
    a(f"s_mul_i32 {sr(S_T0)}, {sr(S_T0)}, {32*TROW}")
    a(f"v_mul_u32_u24 v{VA_}, {TROW}, v{V_I}")
    a(f"v_lshl_add_u32 v{VA_}, v{V_G}, 4, v{VA_}")
    a(f"v_add_u32 v{VA_}, {sr(S_T0)}, v{VA_}")
    a(f"s_and_b32 {sr(S_T1)}, {sr(S_WAVE)}, 1")
    a(f"s_mul_i32 {sr(S_T1)}, {sr(S_T1)}, {16*TROW}")
    a(f"s_add_u32 {sr(S_T1)}, {sr(S_T1)}, {L_LO}")
    a(f"v_add_u32 v{VB_}, {sr(S_T1)}, v{VA_}")
    for k in range(8):
        a(f"v_mov_b32 v{D0+k}, 0")
    tg = {}
    for kap in range(8):
        a(f"ds_read_b128 {vr(FB+4*kap,4)}, v{VB_} offset:{64*kap}")
        a(f"ds_read_b128 {vr(FA+8*kap,4)}, v{VA_} offset:{L_HI + 64*kap}")
        tg[kap] = a(f"ds_read_b128 {vr(FA+8*kap+4,4)}, v{VA_} offset:{L_HI + 16*TROW + 64*kap}")
        if kap >= 3:
            k2 = kap - 3
            a.wait_lg(tg[k2])
            a(f"v_mfma_f32_16x16x32_bf16 {vr(D0,4)}, {vr(FA+8*k2,4)}, {vr(FB+4*k2,4)}, {vr(D0,4)}")
            a(f"v_mfma_f32_16x16x32_bf16 {vr(D1,4)}, {vr(FA+8*k2+4,4)}, {vr(FB+4*k2,4)}, {vr(D1,4)}")
    for k2 in range(5, 8):
        a.wait_lg(tg[k2])
        a(f"v_mfma_f32_16x16x32_bf16 {vr(D0,4)}, {vr(FA+8*k2,4)}, {vr(FB+4*k2,4)}, {vr(D0,4)}")
        a(f"v_mfma_f32_16x16x32_bf16 {vr(D1,4)}, {vr(FA+8*k2+4,4)}, {vr(FB+4*k2,4)}, {vr(D1,4)}")
    J, SH, AD, A0, A1, A2_, TB = R + 14, R + 15, R + 16, R + 17, R + 18, R + 19, R + 20
    a(f"s_and_b32 {sr(S_T1)}, {sr(S_WAVE)}, 1")
    a(f"s_lshl_b32 {sr(S_T1)}, {sr(S_T1)}, 4")
    a(f"v_add_u32 v{J}, {sr(S_T1)}, v{V_I}")
    a(f"s_lshr_b32 {sr(S_T0)}, {sr(S_WAVE)}, 1")
    a(f"s_lshl_b32 {sr(S_T0)}, {sr(S_T0)}, 11")
    a(f"s_add_u32 {sr(S_T0)}, {sr(S_T0)}, {L_TAB}")
    a(f"v_subrev_u32 v{SH}, 1, v{V_G}")
    a(f"v_max_i32 v{SH}, 0, v{SH}")
    a(f"v_sub_u32 v{SH}, 3, v{SH}")
    a(f"v_lshlrev_b32 v{A0}, v{SH}, v{J}")
    a(f"v_mov_b32 v{AD}, 0")
    for gval, add in ((1, 4), (2, 256), (3, 384)):
        a(f"v_mov_b32 v{TB}, {add}")
        a(f"v_cmp_eq_u32 vcc, {gval}, v{V_G}")
        a(f"v_cndmask_b32 v{AD}, v{AD}, v{TB}, vcc")
    a(f"v_add_u32 v{A0}, v{A0}, v{AD}")
    a(f"v_lshl_add_u32 v{A0}, v{A0}, 1, {sr(S_T0)}")
    a(f"v_mov_b32 v{A1}, 4")
    a(f"v_mov_b32 v{TB}, 128")
    a(f"v_cndmask_b32 v{A1}, v{A1}, v{TB}, vcc")
    a(f"v_add_u32 v{A1}, v{A1}, v{A0}")
    a(f"v_mov_b32 v{A2_}, 1600")
    a(f"v_lshlrev_b32 v{TB}, 1, v{J}")
    a(f"v_add_u32 v{TB}, 1024, v{TB}")
    a(f"v_cmp_eq_u32 vcc, 0, v{V_G}")
    a(f"v_cndmask_b32 v{A2_}, v{A2_}, v{TB}, vcc")
    a(f"v_lshl_add_u32 v{TB}, v{V_G}, 8, v{J}")
    a(f"v_mov_b32 v{AD}, 1280")
    a(f"v_cmp_eq_u32 vcc, 0x100, v{TB}")
    a(f"v_cndmask_b32 v{A2_}, v{A2_}, v{AD}, vcc")
    a(f"v_add_u32 v{A2_}, {sr(S_T0)}, v{A2_}")
    PKD = R + 22
    a(f"v_cvt_pk_bf16_f32 v{PKD}, v{D0}, v{D0+1}")
    a(f"v_cvt_pk_bf16_f32 v{PKD+1}, v{D0+2}, v{D0+3}")
    a(f"v_cvt_pk_bf16_f32 v{PKD+2}, v{D1}, v{D1+1}")
    a(f"v_cvt_pk_bf16_f32 v{PKD+3}, v{D1+2}, v{D1+3}")
    a(f"ds_write_b32 v{A0}, v{PKD}")
    a(f"ds_write_b32 v{A1}, v{PKD+1}")
    a(f"ds_write_b16 v{A2_}, v{PKD+2}")
    a(f"ds_write_b16_d16_hi v{A2_}, v{PKD+2} offset:64")
    a(f"ds_write_b16 v{A2_}, v{PKD+3} offset:128")
    a(f"ds_write_b16_d16_hi v{A2_}, v{PKD+3} offset:192")
    a(f"v_mov_b32 v{TB}, {sr(S_T0)}")
    a(f"v_mov_b32 v{AD}, 0")
    a(f"ds_write_b16 v{TB}, v{AD} offset:{2*TAB_ZERO}")
    Z = R + 28
    for k in range(4):
        a(f"v_mov_b32 v{Z+k}, 0")
    a(f"v_and_b32 v{TB}, 15, v{V_L}")
    a(f"v_lshrrev_b32 v{AD}, 1, v{TB}")
    a(f"v_mul_u32_u24 v{AD}, {KCS}, v{AD}")
    a(f"v_and_b32 v{TB}, 1, v{TB}")
    a(f"v_lshl_add_u32 v{AD}, v{TB}, 4, v{AD}")
    a(f"v_add_u32 v{AD}, {L_KC + 4096}, v{AD}")
    a(f"ds_write_b128 v{AD}, {vr(Z,4)}")
    a(f"v_lshrrev_b32 v{AD}, 5, v{V_L}")
    a(f"v_mul_u32_u24 v{AD}, {UBS}, v{AD}")
    a(f"v_and_b32 v{TB}, 31, v{V_L}")
    a(f"v_lshl_add_u32 v{AD}, v{TB}, 4, v{AD}")
    a(f"v_add_u32 v{AD}, {L_UB}, v{AD}")
    a(f"ds_write_b128 v{AD}, {vr(Z,4)}")
    GA = 64
    LI, TX, TY = 76, 77, 78
    a(f"v_lshlrev_b32 v{LI}, 3, v{V_TID}")
    a(f"v_sub_u32 v{LI}, 2047, v{LI}")
    for i in range(0, 12, 2):
        a(f"v_subrev_u32 v{GA+i}, {i}, v{LI}")
        a(f"v_subrev_u32 v{GA+i+1}, {i+1}, v{LI}")
        a(f"v_max_i32 v{TX}, 128, v{GA+i}")
        a(f"v_max_i32 v{TY}, 128, v{GA+i+1}")
        a(f"v_cvt_f32_u32 v{TX}, v{TX}")
        a(f"v_cvt_f32_u32 v{TY}, v{TY}")
        a(f"v_cvt_pk_bf16_f32 v{TX}, v{TX}, v{TY}")
        a(f"v_lshrrev_b32 v{TY}, 16, v{TX}")
        a(f"v_and_b32 v{TX}, 0xffff, v{TX}")
        a(f"v_subrev_u32 v{TX}, 0x4280, v{TX}")
        a(f"v_subrev_u32 v{TY}, 0x4280, v{TY}")
        a(f"v_min_u32 v{GA+i}, v{GA+i}, v{TX}")
        a(f"v_min_u32 v{GA+i+1}, v{GA+i+1}, v{TY}")
    a(f"v_mov_b32 v{TX}, {TAB_ZERO}")
    a(f"v_cmp_eq_u32 vcc, 255, v{V_TID}")
    for i in (8, 9, 10):
        a(f"v_cndmask_b32 v{GA+i}, v{GA+i}, v{TX}, vcc")
    a(f"s_mov_b32 {sr(S_T0)}, {L_TAB}")
    for i in range(11):
        a(f"v_lshl_add_u32 v{GA+i}, v{GA+i}, 1, {sr(S_T0)}")
    a("s_waitcnt lgkmcnt(0)")
    a("s_barrier")
    self.stamp("ktab")
    dump_lds(self, "tab", L_TAB, 4096)
    dump_lds(self, "tables", 0, 65536)

    S_HIM = S_T7
    a(f"s_mov_b32 {sr(S_HIM)}, 0xffff0000")
    DD, EE, HH = 80, 96, 112
    VK0, VK2 = 128, 129
    a(f"v_lshlrev_b32 v{VK0}, 4, v{V_TID}")
    a(f"v_add_u32 v{VK0}, {L_KC}, v{VK0}")
    tgs = {}
    for c in range(2):
        d, hh = DD + 8 * c, HH + 8 * c
        for i in range(11):
            if i & 1:
                tgs[c] = a(f"ds_read_u16_d16_hi v{hh + i//2}, v{GA+i} offset:{2048*c}")
            else:
                tgs[c] = a(f"ds_read_u16 v{d + i//2}, v{GA+i} offset:{2048*c}")
    for c in range(2):
        d, e, hh = DD + 8 * c, EE + 8 * c, HH + 8 * c
        a.wait_lg(tgs[c])
        for k in range(5):
            a(f"v_and_or_b32 v{d+k}, v{hh+k}, {sr(S_HIM)}, v{d+k}")
        for k in range(4):
            a(f"v_alignbit_b32 v{e+k}, v{d+k+1}, v{d+k}, 16")
        a(f"v_alignbit_b32 v{e+4}, v{d+5}, v{d+4}, 16")
        base = c * 4 * KCS
        a(f"ds_write_b128 v{VK0}, {vr(d,4)} offset:{base}")
        a(f"ds_write_b128 v{VK0}, {vr(e,4)} offset:{base + KCS}")
        a(f"v_add_u32 v{VK2}, {base + 2*KCS}, v{VK0}")
        a(f"ds_write2_b32 v{VK2}, v{d+1}, v{d+2} offset0:0 offset1:1")
        a(f"ds_write2_b32 v{VK2}, v{d+3}, v{d+4} offset0:2 offset1:3")
        a(f"v_add_u32 v{VK2+1}, {base + 3*KCS}, v{VK0}")
        a(f"ds_write2_b32 v{VK2+1}, v{e+1}, v{e+2} offset0:0 offset1:1")
        a(f"ds_write2_b32 v{VK2+1}, v{e+3}, v{e+4} offset0:2 offset1:3")
    self.stamp("kcopies")

    VF, UR = R + 40, 112
    a(f"s_lshr_b32 {sr(S_T0)}, {sr(S_WG)}, 4")
    a(f"s_lshl_b32 {sr(S_T0)}, {sr(S_T0)}, 5")
    a(f"s_add_u32 {sr(S_T0)}, {sr(S_T0)}, {WS_FLAGA}")
    a(f"v_lshlrev_b32 v{VF}, 9, v{V_I}")
    a(f"v_add_u32 v{VF}, {sr(S_T0)}, v{VF}")
    poll_flags(self, "U", VF, VF + 1)
    a(f"s_lshl_b32 {sr(S_T0)}, {sr(S_WG)}, 13")
    a(f"s_lshl_b32 {sr(S_T1)}, {sr(S_WAVE)}, 11")
    a(f"s_add_u32 {sr(S_T0)}, {sr(S_T0)}, {sr(S_T1)}")
    a(f"s_add_u32 {sr(S_T0)}, {sr(S_T0)}, {WS_UT}")
    a(f"v_lshlrev_b32 v{VF}, 4, v{V_L}")
    a(f"buffer_load_dwordx4 {vr(UR,4)}, v{VF}, {sr(SRD_WS,4)}, {sr(S_T0)} offen sc1")
    a(f"buffer_load_dwordx4 {vr(UR+4,4)}, v{VF}, {sr(SRD_WS,4)}, {sr(S_T0)} offen offset:1024 sc1")
    a(f"s_lshr_b32 {sr(S_T0)}, {sr(S_WAVE)}, 1")
    a(f"s_mul_i32 {sr(S_T0)}, {sr(S_T0)}, {UBS}")
    a(f"s_and_b32 {sr(S_T1)}, {sr(S_WAVE)}, 1")
    a(f"s_lshl_b32 {sr(S_T1)}, {sr(S_T1)}, 11")
    a(f"s_add_u32 {sr(S_T0)}, {sr(S_T0)}, {sr(S_T1)}")
    a(f"s_add_u32 {sr(S_T0)}, {sr(S_T0)}, {L_UB + 512}")
    a(f"v_add_u32 v{VF}, {sr(S_T0)}, v{VF}")
    a("s_waitcnt vmcnt(0)")
    a(f"ds_write_b128 v{VF}, {vr(UR,4)}")
    a(f"ds_write_b128 v{VF}, {vr(UR+4,4)} offset:1024")
    a("s_waitcnt lgkmcnt(0)")
    a("s_barrier")
    self.stamp("uTin")
    dump_lds(self, "kc", L_KC, 45056)

    CA = 32
    TA = (64, 128)
    UBF = (96, 160)
    VT, VU, B_, S_ = 192, 193, 194, 195
    a(f"s_lshr_b32 {sr(S_T0)}, {sr(S_WAVE)}, 1")
    a(f"s_and_b32 {sr(S_T1)}, {sr(S_WAVE)}, 1")
    a(f"v_sub_u32 v{S_}, 3, v{V_I}")
    a(f"v_and_b32 v{S_}, 3, v{S_}")
    a(f"v_sub_u32 v{B_}, 2031, v{V_I}")
    a(f"v_lshl_add_u32 v{B_}, v{V_G}, 3, v{B_}")
    a(f"v_sub_u32 v{B_}, v{B_}, v{S_}")
    a(f"v_lshlrev_b32 v{B_}, 1, v{B_}")
    a(f"v_mul_u32_u24 v{S_}, {KCS}, v{S_}")
    a(f"v_add_u32 v{VT}, v{B_}, v{S_}")
    a(f"s_mul_i32 {sr(S_T2)}, {sr(S_T0)}, {4*KCS}")
    a(f"s_lshl_b32 {sr(S_T4)}, {sr(S_T1)}, 8")
    a(f"s_sub_u32 {sr(S_T2)}, {sr(S_T2)}, {sr(S_T4)}")
    a(f"s_add_u32 {sr(S_T2)}, {sr(S_T2)}, {L_KC - 64*59}")
    a(f"v_add_u32 v{VT}, {sr(S_T2)}, v{VT}")
    a(f"v_lshlrev_b32 v{VU}, 5, v{V_I}")
    a(f"v_lshl_add_u32 v{VU}, v{V_G}, 4, v{VU}")
    a(f"s_mul_i32 {sr(S_T2)}, {sr(S_T0)}, {UBS}")
    a(f"s_sub_u32 {sr(S_T2)}, {sr(S_T2)}, {sr(S_T4)}")
    a(f"s_add_u32 {sr(S_T2)}, {sr(S_T2)}, {L_UB + 512 - 32 - 64*3}")
    a(f"v_add_u32 v{VU}, {sr(S_T2)}, v{VU}")
    for k in range(32):
        a(f"v_mov_b32 v{CA+k}, 0")

    def conv_reads(rho):
        ta, ub = TA[rho & 1], UBF[rho & 1]
        ops = []
        for k in range(8):
            off = 64 * ((7 - k) * 8 + (3 - rho))
            ops.append(lambda k=k, off=off: a(f"ds_read_b64 {vr(ta+4*k,2)}, v{VT} offset:{off}"))
            ops.append(lambda k=k, off=off: a(f"ds_read_b64 {vr(ta+4*k+2,2)}, v{VT} offset:{off+8}"))
            ops.append(lambda k=k: a(f"ds_read_b128 {vr(ub+4*k,4)}, v{VU} offset:{512*k + 64*(3-rho)}"))
        return ops

    for op in conv_reads(0):
        op()
    for rho in range(4):
        ta, ub = TA[rho & 1], UBF[rho & 1]
        nxt = conv_reads(rho + 1) if rho < 3 else []
        a("s_waitcnt lgkmcnt(0)")
        n = 0
        for t in range(8):
            for i in range(t + 1):
                a(f"v_mfma_f32_16x16x32_bf16 {vr(CA+4*t,4)}, {vr(ta+4*i,4)}, {vr(ub+4*(t-i),4)}, {vr(CA+4*t,4)}")
                n += 1
                if nxt and n % 3 != 0:
                    nxt.pop(0)()
        assert not nxt
    self.stamp("conv")

    VR, YR = 192, 64
    a(f"s_lshl_b32 {sr(S_T0)}, {sr(S_WAVE)}, 13")
    a(f"v_lshl_add_u32 v{VR}, v{V_I}, 2, v{V_G}")
    a(f"v_lshl_add_u32 v{VR}, v{VR}, 4, {sr(S_T0)}")
    for t in range(8):
        a(f"ds_write_b128 v{VR}, {vr(CA+4*t,4)} offset:{L_RED + 1024*t}")
    a(f"s_lshl_b32 {sr(S_T0)}, {sr(S_WAVE)}, 11")
    a(f"v_lshl_add_u32 v{VR+1}, v{V_L}, 4, {sr(S_T0)}")
    a("s_waitcnt lgkmcnt(0)")
    a("s_barrier")
    for tt in range(2):
        for src in range(4):
            a(f"ds_read_b128 {vr(YR + 16*tt + 4*src,4)}, v{VR+1} offset:{L_RED + 8192*src + 1024*tt}")
    a(f"s_lshl_b32 {sr(S_T0)}, {sr(S_WG)}, 13")
    a(f"s_lshl_b32 {sr(S_T1)}, {sr(S_WAVE)}, 11")
    a(f"s_add_u32 {sr(S_T0)}, {sr(S_T0)}, {sr(S_T1)}")
    a(f"s_add_u32 {sr(S_T0)}, {sr(S_T0)}, {WS_YT}")
    a(f"v_lshlrev_b32 v{VR+2}, 4, v{V_L}")
    a("s_waitcnt lgkmcnt(0)")
    for tt in range(2):
        y = YR + 16 * tt
        for r in range(4):
            a(f"v_add_f32 v{y+r}, v{y+r}, v{y+4+r}")
            a(f"v_add_f32 v{y+8+r}, v{y+8+r}, v{y+12+r}")
        for r in range(4):
            a(f"v_cvt_pk_bf16_f32 v{y+4+r}, v{y+r}, v{y+8+r}")
        a(f"buffer_store_dwordx4 {vr(y+4,4)}, v{VR+2}, {sr(SRD_WS,4)}, {sr(S_T0)} offen offset:{1024*tt} sc1")
    self.stamp("ystore")


def phase_c(self):
    a = self.a
    o = self.o
    VD, VRD = 32, 33
    T = 40
    a(f"v_lshrrev_b32 v{T}, 3, v{V_L}")
    a(f"v_lshrrev_b32 v{T+1}, 1, v{T}")
    a(f"v_and_b32 v{T+1}, 3, v{T+1}")
    a(f"v_and_b32 v{T+2}, 7, v{V_L}")
    a(f"v_lshrrev_b32 v{T+3}, 1, v{T+2}")
    a(f"v_xor_b32 v{T+3}, v{T+3}, v{T+1}")
    a(f"v_lshlrev_b32 v{T+3}, 5, v{T+3}")
    a(f"v_and_b32 v{T+2}, 1, v{T+2}")
    a(f"v_lshl_add_u32 v{T+3}, v{T+2}, 4, v{T+3}")
    a(f"v_lshl_add_u32 v{VD}, v{T}, 10, v{T+3}")
    a(f"v_lshrrev_b32 v{T}, 2, v{V_I}")
    a(f"v_lshl_add_u32 v{T}, v{V_G}, 2, v{T}")
    a(f"v_lshrrev_b32 v{T+1}, 1, v{T}")
    a(f"v_and_b32 v{T+1}, 3, v{T+1}")
    a(f"v_lshlrev_b32 v{T}, 7, v{T}")
    a(f"v_and_b32 v{T+2}, 3, v{V_I}")
    a(f"v_lshl_add_u32 v{T}, v{T+2}, 3, v{T}")
    a(f"s_lshl_b32 {sr(S_M0)}, {sr(S_WAVE)}, 13")
    a(f"s_add_u32 {sr(S_M0)}, {sr(S_M0)}, {L_W2S}")
    a(f"v_add_u32 v{T}, {sr(S_M0)}, v{T}")
    for t in range(4):
        a(f"v_xor_b32 v{T+3}, {t}, v{T+1}")
        a(f"v_lshl_add_u32 v{VRD+t}, v{T+3}, 5, v{T}")
    a(f"s_mul_i32 {sr(S_WOFF)}, {sr(S_WAVE)}, {448*1024}")
    a(f"s_lshl_b32 {sr(S_T0)}, {sr(S_DB)}, 7")
    a(f"s_add_u32 {sr(S_WOFF)}, {sr(S_WOFF)}, {sr(S_T0)}")

    def step_rows(st):
        dc, k = divmod(st, 7)
        base = dc * 224
        if k < 3:
            return base + 32 * k, base + 32 * k + 16
        if k < 6:
            return base + 112 + 32 * (k - 3), base + 112 + 32 * (k - 3) + 16
        return base + 96, base + 112 + 96

    wt = {}

    def w2_dma(st):
        slot = (st & 1) * 4096
        r0, r1 = step_rows(st)
        for q in range(4):
            row = (r0 if q < 2 else r1) + 8 * (q & 1)
            a(f"s_add_u32 m0, {sr(S_M0)}, {slot + 1024*q}")
            a(f"s_add_u32 {sr(S_T3)}, {sr(S_WOFF)}, {row*1024}")
            wt[st] = a(f"buffer_load_dwordx4 v{VD}, {sr(SRD_W2,4)}, {sr(S_T3)} offen lds")

    def w2_read(st):
        slot = (st & 1) * 4096
        for t in range(4):
            base = (st * 4 + t) * 4
            a(f"ds_read_b64_tr_b16 {ar(base,2)}, v{VRD+t} offset:{slot}")
            a(f"ds_read_b64_tr_b16 {ar(base+2,2)}, v{VRD+t} offset:{slot + 2048}")

    a("s_waitcnt vmcnt(0)")
    a("s_barrier")

    def offY():
        a(f"s_lshl_b32 {sr(S_T0)}, {sr(S_WG)}, 5")
        a(f"s_add_u32 {sr(S_T0)}, {sr(S_T0)}, {WS_FLAGY}")
    set_flag(self, "Y", offY, T + 8)
    self.stamp("flagY")
    w2_dma(0); w2_dma(1)
    for st in range(14):
        a.wait_vm(wt[st])
        w2_read(st)
        a("s_waitcnt lgkmcnt(0)")
        if st + 2 < 14:
            w2_dma(st + 2)
    self.stamp("w2in")

    ACC, HB = 32, 96
    VF, VH = 224, 225
    a(f"s_lshr_b32 {sr(S_T0)}, {sr(S_TB)}, 1")
    a(f"s_lshl_b32 {sr(S_T0)}, {sr(S_T0)}, 9")
    a(f"s_add_u32 {sr(S_T0)}, {sr(S_T0)}, {WS_FLAGA}")
    a(f"v_lshlrev_b32 v{VF}, 5, v{V_I}")
    a(f"v_add_u32 v{VF}, {sr(S_T0)}, v{VF}")
    poll_flags(self, "H", VF, VF + 2)
    self.stamp("pollH")
    a(f"v_lshlrev_b32 v{VH}, 4, v{V_L}")
    SB = [S_T4, S_T5, S_T6, S_T7]
    for p in range(4):
        a(f"s_add_u32 {sr(S_T0)}, {sr(S_WAVE)}, {p+1}")
        a(f"s_and_b32 {sr(S_T0)}, {sr(S_T0)}, 3")
        a(f"s_lshl_b32 {sr(S_T1)}, {sr(S_TB)}, 2")
        a(f"s_add_u32 {sr(S_T0)}, {sr(S_T0)}, {sr(S_T1)}")
        a(f"s_lshl_b32 {sr(S_T0)}, {sr(S_T0)}, 3")
        a(f"s_lshl_b32 {sr(S_T1)}, {sr(S_WAVE)}, 1")
        a(f"s_add_u32 {sr(S_T0)}, {sr(S_T0)}, {sr(S_T1)}")
        a(f"s_mul_i32 {sr(S_T0)}, {sr(S_T0)}, 7168")
        a(f"s_add_u32 {sr(SB[p])}, {sr(S_T0)}, {WS_H}")
    ht = {}

    def h_load(p, st):
        hb = HB + (p & 1) * 56 + 4 * st
        off = st * 1024
        if off >= 4096:
            a(f"s_add_u32 {sr(S_T3)}, {sr(SB[p])}, {off - off % 4096}")
            so = S_T3
        else:
            so = SB[p]
        ht[(p, st)] = a(f"buffer_load_dwordx4 {vr(hb,4)}, v{VH}, {sr(SRD_WS,4)}, {sr(so)} offen offset:{off % 4096} sc1")

    for p in range(2):
        for st in range(14):
            h_load(p, st)
    for k in range(64):
        a(f"v_mov_b32 v{ACC+k}, 0")
    EU, EY, ED, EB, EG = 208, 216, 228, 236, 244
    VE = 246
    VRW = 250
    for p in range(4):
        acc = lambda t: ACC + (p * 4 + t) * 4
        for st in range(14):
            a.wait_vm(ht[(p, st)])
            hb = HB + (p & 1) * 56 + 4 * st
            for t in range(4):
                a(f"v_mfma_f32_16x16x32_bf16 {vr(acc(t),4)}, {ar((st*4+t)*4,4)}, {vr(hb,4)}, {vr(acc(t),4)}")
            if p + 2 < 4:
                h_load(p + 2, st)
        if p < 3:
            a(f"s_add_u32 {sr(S_T0)}, {sr(S_WAVE)}, {p+1}")
            a(f"s_and_b32 {sr(S_T0)}, {sr(S_T0)}, 3")
            a(f"s_mul_i32 {sr(S_T0)}, {sr(S_T0)}, {3*4096}")
            a(f"s_add_u32 {sr(S_T0)}, {sr(S_T0)}, {L_RED + p*4096}")
            a(f"v_lshl_add_u32 v{VRW}, v{V_L}, 4, {sr(S_T0)}")
            for t in range(4):
                a(f"ds_write_b128 v{VRW}, {vr(acc(t),4)} offset:{1024*t}")
    self.stamp("gemm2")
    a(f"s_lshl_b32 {sr(S_T0)}, {sr(S_DB)}, 10")
    a(f"s_add_u32 {sr(S_T0)}, {sr(S_T0)}, {WS_FLAGY}")
    a(f"v_and_b32 v{VF}, 31, v{V_L}")
    a(f"v_lshlrev_b32 v{VF}, 5, v{VF}")
    a(f"v_add_u32 v{VF}, {sr(S_T0)}, v{VF}")
    poll_flags(self, "Y", VF, VF + 2)
    a(f"s_lshl_b32 {sr(S_T0)}, {sr(S_TB)}, 6")
    a(f"s_lshl_b32 {sr(S_T1)}, {sr(S_WAVE)}, 4")
    a(f"s_add_u32 {sr(S_T0)}, {sr(S_T0)}, {sr(S_T1)}")
    a(f"v_add_u32 v{VE}, {sr(S_T0)}, v{V_I}")
    a(f"s_lshl_b32 {sr(S_T1)}, {sr(S_DB)}, 6")
    a(f"v_lshl_add_u32 v{VE+1}, v{V_G}, 2, {sr(S_T1)}")
    a(f"v_lshlrev_b32 v{VE+2}, 10, v{VE}")
    a(f"v_lshl_add_u32 v{VE+2}, v{VE+1}, 1, v{VE+2}")
    a(f"v_lshlrev_b32 v{VE+3}, 12, v{VE+1}")
    a(f"v_lshl_add_u32 v{VE+3}, v{VE}, 2, v{VE+3}")
    a(f"v_add_u32 v{VE+3}, {WS_YT}, v{VE+3}")
    for t in range(4):
        a(f"buffer_load_dwordx2 {vr(EU+2*t,2)}, v{VE+2}, {sr(SRD_U,4)}, 0 offen offset:{32*t}")
    for t in range(4):
        a(f"s_mov_b32 {sr(S_T2)}, {t*8*8192}")
        a(f"buffer_load_dword v{EY+2*t}, v{VE+3}, {sr(SRD_WS,4)}, {sr(S_T2)} offen sc1")
        a(f"s_mov_b32 {sr(S_T2)}, {t*8*8192 + 8192}")
        a(f"buffer_load_dword v{EY+2*t+1}, v{VE+3}, {sr(SRD_WS,4)}, {sr(S_T2)} offen sc1")
    a(f"v_lshlrev_b32 v{VF}, 1, v{VE+1}")
    for t in range(4):
        a(f"global_load_dwordx2 {vr(ED+2*t,2)}, v{VF}, {sr(P_DSKIP,2)} offset:{32*t}")
        a(f"global_load_dwordx2 {vr(EB+2*t,2)}, v{VF}, {sr(P_B2,2)} offset:{32*t}")
    a(f"v_lshlrev_b32 v{VF+1}, 2, v{VE}")
    a(f"v_add_u32 v{VF+1}, {WS_G}, v{VF+1}")
    a(f"buffer_load_dword v{EG}, v{VF+1}, {sr(SRD_WS,4)}, 0 offen sc1")
    a("s_waitcnt lgkmcnt(0)")
    a("s_barrier")
    a(f"s_mul_i32 {sr(S_T0)}, {sr(S_WAVE)}, {3*4096}")
    a(f"s_add_u32 {sr(S_T0)}, {sr(S_T0)}, {L_RED}")
    a(f"v_lshl_add_u32 v{VRW}, v{V_L}, 4, {sr(S_T0)}")
    PR = HB
    for p in range(3):
        for t in range(4):
            a(f"ds_read_b128 {vr(PR+16*p+4*t,4)}, v{VRW} offset:{4096*p + 1024*t}")
    own = ACC + 48
    a("s_waitcnt lgkmcnt(0)")
    for p in range(3):
        for k in range(16):
            a(f"v_add_f32 v{own+k}, v{own+k}, v{PR+16*p+k}")
    a("s_waitcnt vmcnt(0)")
    OM, X0 = EG + 1, 160
    a(f"v_sub_f32 v{OM}, 1.0, v{EG}")
    a(f"v_cvt_pk_bf16_f32 v{OM}, v{OM}, v{OM}")
    a(f"v_and_b32 v{OM}, 0xffff0000, v{OM}")
    res = 176
    for t in range(4):
        for h in range(2):
            u2, y2, d2, b2 = EU + 2 * t + h, EY + 2 * t + h, ED + 2 * t + h, EB + 2 * t + h
            for e in range(2):
                k = 4 * t + 2 * h + e
                ext = (lambda dst, src: a(f"v_lshlrev_b32 v{dst}, 16, v{src}")) if e == 0 else (lambda dst, src: a(f"v_and_b32 v{dst}, 0xffff0000, v{src}"))
                ext(X0, u2); ext(X0 + 1, y2); ext(X0 + 2, d2); ext(X0 + 3, b2)
                a(f"v_fma_f32 v{X0}, v{X0}, v{X0+2}, v{X0+1}")
                a(f"v_add_f32 v{X0+3}, v{own+k}, v{X0+3}")
                a(f"v_mul_f32 v{X0}, v{EG}, v{X0}")
                a(f"v_fma_f32 v{X0+4+e}, v{OM}, v{X0+3}, v{X0}")
            a(f"v_cvt_pk_bf16_f32 v{res+2*t+h}, v{X0+4}, v{X0+5}")
    a(f"v_and_b32 v{VF}, 1, v{V_G}")
    a(f"v_lshlrev_b32 v{VF}, 5, v{VF}")
    a(f"v_lshrrev_b32 v{VF+1}, 1, v{V_G}")
    a(f"v_lshl_add_u32 v{VF}, v{VF+1}, 4, v{VF}")
    a(f"v_lshl_add_u32 v{VF}, v{VE}, 10, v{VF}")
    a(f"s_lshl_b32 {sr(S_T0)}, {sr(S_DB)}, 7")
    for P in range(2):
        r0 = res + 4 * P
        a(f"v_permlane16_swap_b32 v{r0}, v{r0+2}")
        a(f"v_permlane16_swap_b32 v{r0+1}, v{r0+3}")
    for P in range(2):
        r0 = res + 4 * P
        a(f"buffer_store_dwordx4 {vr(r0,4)}, v{VF}, {sr(SRD_OUT,4)}, {sr(S_T0)} offen offset:{64*P}")


def attach(Gen):
    Gen.phase_b = phase_b
    Gen.phase_c = phase_c
```

```python
import sys, struct, math
from asmlib import Asm, vr, ar, sr

KNAME = "gated_mix__ssm_conv_s4__mixer_channel_mlp__prompt_kernel"

WS_EPOCH = 0
WS_FLAGA = 4096
WS_FLAGY = 16384
WS_G = 32768
WS_UT = 65536
WS_YT = WS_UT + (2 << 20)
WS_H = WS_YT + (2 << 20)
WS_END = WS_H + 128 * 8 * 7 * 1024
WS_DUMP = WS_END + (1 << 20)

LDS_TOTAL = 163840
L_W1 = 0
L_GATEW = 131072
L_ONES = L_GATEW + 1024 + 64
L_ZEROS = L_ONES + 1024 + 64
L_UTS = L_ZEROS + 1024 + 128
L_CS = L_UTS + 8192
L_B1 = L_CS + 512
TROW = 544
L_HI = 0
L_LO = 2 * 32 * TROW
L_TAB = 4 * 32 * TROW
TAB_ZERO = 1000
KCS = 4160
L_KC = L_TAB + 4096
L_UB = L_KC + 8 * KCS
UBS = 4608
L_W2S = L_UB + 2 * UBS
L_RED = 0
L_NONCE = LDS_TOTAL - 16
assert L_W2S + 4 * 8192 <= LDS_TOTAL

S_WG, S_T0, S_WAVE, S_RB, S_CB, S_TB, S_DB, S_T1, S_T2, S_T3 = 2, 3, 4, 5, 6, 8, 9, 10, 11, 7
SRD_U, SRD_W1, SRD_W2, SRD_WS, SRD_OUT = 12, 16, 20, 24, 28
P_U, P_ARE, P_AIM, P_BRE, P_BIM, P_CRE, P_CIM, P_LOGDT = 32, 34, 36, 38, 40, 42, 44, 46
P_DSKIP, P_W1, P_B1, P_W2, P_B2, P_GATE, P_OUT, P_DBG, P_WS = 48, 52, 54, 56, 58, 60, 62, 64, 66
S_X0, S_X1, S_WOFF, S_M0, S_NONCE, S_IDX = 68, 69, 70, 71, 72, 73
S_EX = 74
S_C2 = 76
S_M1 = 78
S_M2 = 80
S_M3 = 82
S_PC = 84
S_T4, S_T5, S_T6, S_T7 = 86, 87, 88, 89
S_TS = 90
S_SPIN = 92
S_ROT, S_XS, S_WS2, S_MW = 93, 94, 95, 96

V_TID, V_L, V_I, V_G = 0, 1, 2, 3
V_KP = 16
V_EPOCH = 23

BF16_ONE2 = 0x3F803F80


def f2u(x):
    return struct.unpack("<I", struct.pack("<f", x))[0]


class Gen:
    def __init__(self, opts):
        self.o = opts
        self.a = Asm()
        self.stamp_n = 0

    def stamp(self, name):
        if not self.o.get("stamps"):
            return
        a = self.a
        n = self.stamp_n
        self.stamp_n += 1
        self.o.setdefault("stamp_names", []).append(name)
        a(f"s_memtime {sr(S_TS,2)}")
        a("s_waitcnt lgkmcnt(0)")
        a(f"v_writelane_b32 v255, {sr(S_TS)}, {n}")

    def fstamp(self, name):
        if self.o.get("fine"):
            self.stamp(name)

    def stamp_flush(self):
        if not self.o.get("stamps"):
            return
        a = self.a
        a(f"s_lshl_b32 {sr(S_T0)}, {sr(S_WG)}, 2")
        a(f"s_add_u32 {sr(S_T0)}, {sr(S_T0)}, {sr(S_WAVE)}")
        a(f"s_lshl_b32 {sr(S_T0)}, {sr(S_T0)}, 8")
        a(f"s_add_u32 {sr(S_T0)}, {sr(S_T0)}, {WS_END}")
        a(f"v_lshlrev_b32 v254, 2, v{V_L}")
        a(f"buffer_store_dword v255, v254, {sr(SRD_WS,4)}, {sr(S_T0)} offen")

    def prologue(self):
        a = self.a
        a(f"s_cmp_ge_u32 {sr(S_WG)}, 256")
        a("s_cbranch_scc1 L_end")
        if self.o.get("clk"):
            a("s_memtime s[98:99]")
            a("s_memrealtime s[100:101]")
        a(f"s_load_dwordx16 {sr(32,16)}, s[0:1], 0")
        a(f"s_load_dwordx2 {sr(P_DSKIP,2)}, s[0:1], 64")
        a(f"s_load_dwordx4 {sr(52,4)}, s[0:1], 80")
        a(f"s_load_dwordx4 {sr(56,4)}, s[0:1], 96")
        a(f"s_load_dwordx4 {sr(60,4)}, s[0:1], 112")
        a(f"s_load_dwordx4 {sr(64,4)}, s[0:1], 128")
        if self.o.get("stamps"):
            a("v_mov_b32 v255, 0")
        a(f"v_lshrrev_b32 v4, 6, v{V_TID}")
        a(f"v_and_b32 v{V_L}, 63, v{V_TID}")
        a(f"v_readfirstlane_b32 {sr(S_WAVE)}, v4")
        a(f"v_and_b32 v{V_I}, 15, v{V_L}")
        a(f"v_lshrrev_b32 v{V_G}, 4, v{V_L}")
        a(f"s_and_b32 {sr(S_T0)}, {sr(S_WG)}, 7")
        a(f"s_lshr_b32 {sr(S_IDX)}, {sr(S_WG)}, 3")
        a(f"s_and_b32 {sr(S_T1)}, {sr(S_IDX)}, 3")
        a(f"s_lshr_b32 {sr(S_DB)}, {sr(S_IDX)}, 2")
        a(f"s_lshr_b32 {sr(S_T2)}, {sr(S_T0)}, 1")
        a(f"s_lshl_b32 {sr(S_T2)}, {sr(S_T2)}, 2")
        a(f"s_add_u32 {sr(S_RB)}, {sr(S_T2)}, {sr(S_T1)}")
        a(f"s_and_b32 {sr(S_T2)}, {sr(S_T0)}, 1")
        a(f"s_lshl_b32 {sr(S_T2)}, {sr(S_T2)}, 3")
        a(f"s_add_u32 {sr(S_CB)}, {sr(S_T2)}, {sr(S_DB)}")
        a(f"s_lshl_b32 {sr(S_T2)}, {sr(S_T0)}, 2")
        a(f"s_add_u32 {sr(S_TB)}, {sr(S_T2)}, {sr(S_T1)}")

    def build_srds(self):
        a = self.a
        for srd, p, size in ((SRD_U, P_U, 2048 * 1024), (SRD_W1, P_W1, 512 * 3584), (SRD_W2, P_W2, 1792 * 1024),
                             (SRD_WS, P_WS, WS_DUMP + (16 << 20) if self.o.get("dump") else WS_END + (256 * 4 * 256 if self.o.get("stamps") else 0)), (SRD_OUT, P_OUT, 2048 * 1024)):
            a(f"s_mov_b32 {sr(srd)}, {sr(p)}")
            a(f"s_and_b32 {sr(srd+1)}, {sr(p+1)}, 0xffff")
            a(f"s_mov_b32 {sr(srd+2)}, {size}")
            a(f"s_mov_b32 {sr(srd+3)}, 0x20000")

    def phase_a(self):
        a = self.a
        o = self.o
        VA = 4
        VAC = 11
        VGT = 13
        VXR = 14
        VUT = 24
        ACC = 32
        ACCS, ACCG, ACCC = 88, 96, 104
        AF = 112
        AC = 140
        GF = 148
        ONEB = 152
        XF = 156
        VXD, VWD, VUS = 172, 176, 178
        VKO, VB1, VGC = 179, 182, 183
        T = 184
        acc = lambda t, tt: ACC + (t * 2 + tt) * 4
        X = lambda s, tt: XF + ((s & 1) * 2 + tt) * 4

        for q in range(4):
            a(f"v_or_b32 v{T}, {4*(q&1)}, v{V_G}")
            a(f"v_and_b32 v{T+1}, 7, v{V_L}")
            a(f"v_xor_b32 v{T+1}, v{T+1}, v{T}")
            a(f"v_lshrrev_b32 v{T+2}, 3, v{V_L}")
            a(f"v_lshlrev_b32 v{T+2}, 10, v{T+2}")
            a(f"v_lshl_add_u32 v{VXD+q}, v{T+1}, 4, v{T+2}")
            if q:
                a(f"v_add_u32 v{VXD+q}, {q*(8192-1024)}, v{VXD+q}")
        a(f"v_lshrrev_b32 v{T}, 2, v{V_L}")
        a(f"v_lshlrev_b32 v{T}, 10, v{T}")
        a(f"v_and_b32 v{T+1}, 3, v{V_L}")
        a(f"v_lshl_add_u32 v{VUS}, v{T+1}, 4, v{T}")
        a(f"s_lshl_b32 {sr(S_T0)}, {sr(S_WAVE)}, 12")
        for kk in range(2):
            a(f"v_or_b32 v{T}, {4*kk}, v{V_G}")
            a(f"v_lshrrev_b32 v{T+1}, 1, v{V_I}")
            a(f"v_xor_b32 v{T}, v{T}, v{T+1}")
            a(f"v_lshlrev_b32 v{T+1}, 7, v{V_I}")
            a(f"v_lshl_add_u32 v{T}, v{T}, 4, v{T+1}")
            a(f"v_add_u32 v{VXR+kk}, {sr(S_T0)}, v{T}")
        a(f"s_and_b32 {sr(S_T0)}, {sr(S_WAVE)}, 1")
        a(f"s_lshl_b32 {sr(S_T0)}, {sr(S_T0)}, 2")
        a(f"v_or_b32 v{T}, {sr(S_T0)}, v{V_G}")
        a(f"v_lshrrev_b32 v{T+1}, 1, v{V_I}")
        a(f"v_xor_b32 v{T+1}, v{T+1}, v{T}")
        a(f"v_min_u32 v{T+1}, 6, v{T+1}")
        a(f"v_lshlrev_b32 v{T+1}, 5, v{T+1}")
        a(f"v_and_b32 v{T+2}, 1, v{V_I}")
        a(f"v_lshl_add_u32 v{T+1}, v{T+2}, 4, v{T+1}")
        a(f"v_mul_u32_u24 v{VWD}, 3584, v{V_G}")
        a(f"v_add_u32 v{VWD}, v{VWD}, v{T+1}")
        a(f"v_add_u32 v{VWD+1}, {4*3584-1024}, v{VWD}")
        a(f"v_lshrrev_b32 v{T}, 2, v{V_I}")
        a(f"v_and_b32 v{T+1}, 1, v{V_G}")
        a(f"v_lshl_or_b32 v{T+1}, v{T+1}, 2, v{T}")
        a(f"v_lshl_add_u32 v{T+2}, v{V_G}, 3, v{T}")
        a(f"v_lshlrev_b32 v{T+2}, 8, v{T+2}")
        a(f"v_and_b32 v{T+3}, 3, v{V_I}")
        a(f"v_lshl_add_u32 v{T+2}, v{T+3}, 3, v{T+2}")
        a(f"v_add_u32 v{T+2}, 0x10000, v{T+2}")
        for t in range(7):
            a(f"v_xor_b32 v{T+4}, {t}, v{T+1}")
            a(f"v_lshl_add_u32 v{VA+t}, v{T+4}, 5, v{T+2}")
        a(f"s_lshl_b32 {sr(S_T0)}, {sr(S_WAVE)}, 1")
        for k in range(2):
            a(f"v_xor_b32 v{T+4}, {sr(S_T0)}, v{T+1}")
            if k:
                a(f"v_xor_b32 v{T+4}, 1, v{T+4}")
            a(f"v_lshl_add_u32 v{VAC+k}, v{T+4}, 5, v{T+2}")
        a(f"v_mov_b32 v{VGT}, {L_ZEROS}")
        a(f"v_mov_b32 v{T+4}, {L_ONES}")
        a(f"v_mov_b32 v{T+5}, {L_GATEW}")
        a(f"v_cmp_eq_u32 vcc, 0, v{T+3}")
        a(f"v_cndmask_b32 v{VGT}, v{VGT}, v{T+4}, vcc")
        a(f"v_cmp_eq_u32 vcc, 1, v{T+3}")
        a(f"v_cndmask_b32 v{VGT}, v{VGT}, v{T+5}, vcc")
        a(f"v_lshl_add_u32 v{VGT}, v{V_G}, 4, v{VGT}")
        for k in range(4):
            a(f"v_mov_b32 v{ONEB+k}, {BF16_ONE2:#x}")
            a(f"v_mov_b32 v{T+8+k}, 0")
        a(f"v_lshlrev_b32 v{T}, 4, v{V_L}")
        a(f"v_add_u32 v{T+12}, {L_GATEW}, v{T}")
        a(f"ds_write_b128 v{T+12}, {vr(ONEB,4)} offset:{L_ONES - L_GATEW}")
        a(f"ds_write_b128 v{T+12}, {vr(T+8,4)} offset:{L_ZEROS - L_GATEW}")
        for r in range(ACC, ACCC + 8):
            a(f"v_mov_b32 v{r}, 0")
        a(f"s_lshr_b32 {sr(S_T0)}, {sr(S_WAVE)}, 1")
        a(f"s_lshl_b32 {sr(S_T1)}, {sr(S_WG)}, 1")
        a(f"s_add_u32 {sr(S_T1)}, {sr(S_T1)}, {sr(S_T0)}")
        a(f"s_and_b32 {sr(S_T0)}, {sr(S_WAVE)}, 1")
        a(f"s_lshl_b32 {sr(S_T0)}, {sr(S_T0)}, 6")
        a(f"s_lshl_b32 {sr(S_T2)}, {sr(S_T1)}, 7")
        a(f"s_add_u32 {sr(S_T2)}, {sr(S_T2)}, {sr(S_T0)}")
        a(f"v_add_lshl_u32 v{VKO}, v{V_L}, {sr(S_T2)}, 1")
        a(f"s_lshl_b32 {sr(S_T1)}, {sr(S_T1)}, 1")
        a(f"v_mov_b32 v{VKO+1}, {sr(S_T1)}")
        a(f"v_and_b32 v{T+3}, 127, v{V_TID}")
        a(f"v_min_u32 v{T+3}, 111, v{T+3}")
        a(f"s_mul_i32 {sr(S_T0)}, {sr(S_CB)}, 112")
        a(f"v_add_lshl_u32 v{VKO+2}, v{T+3}, {sr(S_T0)}, 1")
        a(f"s_lshl_b32 {sr(S_X0)}, {sr(S_RB)}, 2")
        a(f"s_add_u32 {sr(S_X0)}, {sr(S_X0)}, {sr(S_WAVE)}")
        a(f"s_lshl_b32 {sr(S_X0)}, {sr(S_X0)}, 15")
        a(f"s_add_u32 {sr(S_X1)}, {sr(S_X0)}, 16384")
        a(f"s_mul_i32 {sr(S_WOFF)}, {sr(S_WAVE)}, {8*3584}")
        a(f"s_mul_i32 {sr(S_T0)}, {sr(S_CB)}, 224")
        a(f"s_add_u32 {sr(S_WOFF)}, {sr(S_WOFF)}, {sr(S_T0)}")
        a(f"s_lshl_b32 {sr(S_M0)}, {sr(S_WAVE)}, 12")
        a(f"s_lshl_b32 {sr(S_MW)}, {sr(S_WAVE)}, 11")
        a(f"s_add_u32 {sr(S_MW)}, {sr(S_MW)}, 0x10000")
        a(f"s_add_u32 {sr(S_ROT)}, {sr(S_RB)}, {sr(S_CB)}")
        a(f"s_getpc_b64 {sr(S_PC,2)}")
        a.label("L_pc")
        a(f"s_lshl_b32 {sr(S_T0)}, {sr(S_IDX)}, 2")
        a(f"s_add_u32 {sr(S_T0)}, {sr(S_T0)}, {sr(S_WAVE)}")
        a(f"s_mul_i32 {sr(S_T0)}, {sr(S_T0)}, PF_LINES")
        a(f"v_min_u32 v{T+4}, PF_LINES-1, v{V_L}")
        a(f"v_add_lshl_u32 v{T+4}, v{T+4}, {sr(S_T0)}, 6")
        a(f"v_min_u32 v{T+4}, L_end-L_pc, v{T+4}")
        a("s_waitcnt lgkmcnt(0)")
        self.build_srds()
        self.stamp("start")
        xtag, wtag = {}, {}

        def x_ops(S):
            ops = []
            for h in range(2):
                def setup(h=h):
                    if h == 0:
                        a(f"s_add_u32 {sr(S_XS)}, {sr(S_ROT)}, {S}")
                        a(f"s_and_b32 {sr(S_XS)}, {sr(S_XS)}, 7")
                        a(f"s_lshl_b32 {sr(S_XS)}, {sr(S_XS)}, 7")
                        a(f"s_add_u32 {sr(S_XS)}, {sr(S_XS)}, {sr(S_X0)}")
                    a(f"s_add_u32 m0, {sr(S_M0)}, {(S % 4) * 16384}")
                ops.append(setup)
                for q in (2 * h, 2 * h + 1):
                    def ld(q=q):
                        xtag[S] = a(f"buffer_load_dwordx4 v{VXD+q}, {sr(SRD_U,4)}, {sr(S_XS)} offen offset:{q*1024} lds")
                    ops.append(ld)
            return ops

        def w_ops(s):
            def setup():
                if (s & 1) == 0:
                    a(f"s_add_u32 {sr(S_WS2)}, {sr(S_ROT)}, {s//2}")
                    a(f"s_and_b32 {sr(S_WS2)}, {sr(S_WS2)}, 7")
                    a(f"s_mul_i32 {sr(S_WS2)}, {sr(S_WS2)}, {64*3584}")
                    a(f"s_add_u32 {sr(S_WS2)}, {sr(S_WS2)}, {sr(S_WOFF)}")
                else:
                    a(f"s_add_u32 {sr(S_WS2)}, {sr(S_WS2)}, {32*3584}")
                a(f"s_add_u32 m0, {sr(S_MW)}, {(s % 8) * 8192}")
            ops = [setup]
            for q in range(2):
                def ld(q=q):
                    wtag[s] = a(f"buffer_load_dwordx4 v{VWD+q}, {sr(SRD_W1,4)}, {sr(S_WS2)} offen offset:{q*1024} lds")
                ops.append(ld)
            return ops

        def run(ops):
            for op in ops:
                op()

        if "nodma" in o["exp"]:
            real_x, real_w = x_ops, w_ops

            def x_ops(S):
                ops = real_x(S)
                if S >= 3:
                    xtag[S] = xtag[0]
                    return [lambda: None] * len(ops)
                return ops

            def w_ops(s):
                ops = real_w(s)
                if s >= 6:
                    wtag[s] = wtag[0]
                    return [lambda: None] * len(ops)
                return ops

        a(f"s_or_b32 {sr(S_T0)}, {sr(S_WG)}, {sr(S_WAVE)}")
        a(f"s_cmp_lg_u32 {sr(S_T0)}, 0")
        a("s_cbranch_scc1 L_noepoch0")
        a(f"v_mov_b32 v{T+12}, 0")
        a(f"buffer_load_dword v{V_EPOCH}, v{T+12}, {sr(SRD_WS,4)}, 0 offen sc1", count=False)
        a.label("L_noepoch0")
        run(x_ops(0)); run(w_ops(0))
        a(f"v_lshlrev_b32 v{T+8}, 4, v{V_L}")
        a(f"s_mov_b32 m0, {L_GATEW}")
        a(f"global_load_dword v{T+5}, v{T+4}, {sr(S_PC,2)}")
        tag_gate = a(f"global_load_lds_dwordx4 v{T+8}, {sr(P_GATE,2)}")
        tag_epoch = tag_gate
        run(w_ops(1))
        a(f"s_lshl_b32 {sr(S_T0)}, {sr(S_WAVE)}, 11")
        a(f"s_add_u32 {sr(S_T0)}, {sr(S_T0)}, {L_UTS}")
        a(f"s_lshl_b32 {sr(S_T1)}, {sr(S_CB)}, 6")
        a(f"s_add_u32 {sr(S_T1)}, {sr(S_T1)}, {sr(S_X0)}")
        a(f"s_mov_b32 m0, {sr(S_T0)}")
        a(f"s_add_u32 {sr(S_T2)}, {sr(S_T1)}, {16384-1024}")
        a(f"buffer_load_dwordx4 v{VUS}, {sr(SRD_U,4)}, {sr(S_T1)} offen lds")
        a(f"buffer_load_dwordx4 v{VUS}, {sr(SRD_U,4)}, {sr(S_T2)} offen offset:1024 lds")
        for S in (1, 2):
            run(x_ops(S)); run(w_ops(2 * S)); run(w_ops(2 * S + 1))
        misc = []
        for k, p in enumerate((P_ARE, P_AIM, P_BRE, P_BIM, P_CRE, P_CIM)):
            misc.append(lambda k=k, p=p: a(f"global_load_ushort v{V_KP+k}, v{VKO}, {sr(p,2)}"))
        misc.append(lambda: a(f"global_load_ushort v{V_KP+6}, v{VKO+1}, {sr(P_LOGDT,2)}"))
        tags = {}

        def ld_b1():
            tags["b1"] = a(f"global_load_ushort v{VB1}, v{VKO+2}, {sr(P_B1,2)}")
        misc.append(ld_b1)

        rd_tag = {}

        def rd_A(s, t, hi):
            rd_tag[("A", t)] = a(f"ds_read_b64_tr_b16 {vr(AF+4*t+2*hi,2)}, v{VA+t} offset:{(s % 8) * 8192 + 1024 * hi}")

        def rd_C(s, k, hi):
            rd_tag[("C", k)] = a(f"ds_read_b64_tr_b16 {vr(AC+4*k+2*hi,2)}, v{VAC+k} offset:{(s % 8) * 8192 + 1024 * hi}")

        def rd_G(s):
            if (s & 1) == 0:
                a(f"s_add_u32 {sr(S_T0)}, {sr(S_ROT)}, {s//2}")
                a(f"s_and_b32 {sr(S_T0)}, {sr(S_T0)}, 7")
                a(f"s_lshl_b32 {sr(S_T0)}, {sr(S_T0)}, 7")
                a(f"v_add_u32 v{VGC}, {sr(S_T0)}, v{VGT}")
            rd_tag["G"] = a(f"ds_read_b128 {vr(GF,4)}, v{VGC} offset:{64*(s&1)}")

        def rd_X(s, tt):
            a(f"ds_read_b128 {vr(X(s,tt),4)}, v{VXR+(s&1)} offset:{((s // 2) % 4) * 16384 + 2048*tt}")

        def step_ready(s):
            tg = wtag[s]
            if (s & 1) == 0 and xtag[s // 2][1] > tg[1]:
                tg = xtag[s // 2]
            if s == 0:
                tg = tag_epoch
            a.wait_vm(tg)
            if s == 0:
                a("s_waitcnt lgkmcnt(0)")
            if "nobar" not in o["exp"] or s == 0:
                a("s_barrier")

        step_ready(0)
        self.stamp("stage0")
        a(f"s_or_b32 {sr(S_T0)}, {sr(S_WG)}, {sr(S_WAVE)}")
        a(f"s_cmp_lg_u32 {sr(S_T0)}, 0")
        a("s_cbranch_scc1 L_noepoch")
        a(f"v_mov_b32 v{T+12}, 0")
        a(f"s_mov_b32 {sr(S_T1)}, 0x9e3779b1")
        a(f"v_mul_lo_u32 v{T+10}, v{V_EPOCH}, {sr(S_T1)}")
        a(f"v_add_u32 v{T+10}, 0x7f4a7c15, v{T+10}")
        a(f"v_mov_b32 v{T+11}, 1")
        a(f"buffer_store_dword v{T+10}, v{T+12}, {sr(SRD_WS,4)}, 0 offen sc1", count=False)
        a(f"global_store_dwordx2 v{T+12}, {vr(T+10,2)}, {sr(P_DBG,2)} sc1", count=False)
        a.label("L_noepoch")
        rd_X(0, 0); rd_X(0, 1)
        for t in range(7):
            rd_A(0, t, 0); rd_A(0, t, 1)
        rd_G(0)
        for k in range(2):
            rd_C(0, k, 0); rd_C(0, k, 1)
        def paced(ops):
            out = []
            for i in range(0, len(ops), 3):
                out += [ops[i], ops[i + 1], None, None, None, None, ops[i + 2], None, None, None]
            return out
        x3 = x_ops(3)
        x3_tail = x3[3:]
        bg = paced(w_ops(6)) + paced(x3[:3])
        for s in range(16):
            nxt = s + 1 < 16
            self.fstamp(f"k{s}")
            if nxt:
                step_ready(s + 1)
            if s == 1:
                bg += paced(x3_tail) + paced(w_ops(7))
            if s >= 1 and s + 7 < 16:
                bg += paced(w_ops(s + 7))
            if s >= 2 and (s & 1) == 0 and s // 2 + 3 < 8:
                xo = x_ops(s // 2 + 3)
                bg += paced(xo[:3])
                xrest = xo[3:]
            if s >= 3 and (s & 1) == 1 and (s - 1) // 2 + 3 < 8:
                bg += paced(xrest)
            if s == 10:
                for m in misc:
                    bg += [m, None]
            reads = []
            if nxt:
                reads = [[lambda: rd_X(s + 1, 0)], [lambda: rd_X(s + 1, 1)]]
                for t in range(7):
                    reads.append([lambda t=t: rd_A(s + 1, t, 0)])
                    reads.append([lambda t=t: rd_A(s + 1, t, 1)])
                if "noC" not in o["exp"]:
                    reads.append([lambda: rd_G(s + 1)])
                    reads.append([])
                    reads.append([lambda: rd_C(s + 1, 0, 0), lambda: rd_C(s + 1, 0, 1)])
                    reads.append([lambda: rd_C(s + 1, 1, 0), lambda: rd_C(s + 1, 1, 1)])
            pend = dict(rd_tag)
            mf = []
            for t in range(7):
                for tt in range(2):
                    w = pend[("A", min(t + 1, 6))] if (tt == 0 and t % 2 == 0) else None
                    mf.append((w, f"v_mfma_f32_16x16x32_bf16 {vr(acc(t,tt),4)}, {vr(AF+4*t,4)}, {vr(X(s,tt),4)}, {vr(acc(t,tt),4)}"))
            for tt in range(2):
                mf.append((pend[("C", 1)] if tt == 0 else None,
                           f"v_mfma_f32_16x16x32_bf16 {vr(ACCS+4*tt,4)}, {vr(GF,4)}, {vr(X(s,tt),4)}, {vr(ACCS+4*tt,4)}"))
            for k in range(2):
                mf.append((None, f"v_mfma_f32_16x16x32_bf16 {vr(ACCC+4*k,4)}, {vr(AC+4*k,4)}, {vr(ONEB,4)}, {vr(ACCC+4*k,4)}"))
            for tt in range(2):
                mf.append((None, f"v_mfma_f32_16x16x32_bf16 {vr(ACCG+4*tt,4)}, {vr(X(s,tt),4)}, {vr(X(s,tt),4)}, {vr(ACCG+4*tt,4)}"))
            if "noC" in o["exp"]:
                mf = mf[:14]
            if "noreads" in o["exp"]:
                reads = []
                mf = [(None, t) for _, t in mf]
            for j, (w, text) in enumerate(mf):
                if w is not None:
                    a.wait_lg(w)
                a(text)
                if j < len(reads):
                    for r in reads[j]:
                        r()
                if bg:
                    op = bg.pop(0)
                    if op is not None:
                        op()
        assert not [b for b in bg if b is not None]
        self.stamp("gemm1")

        a.wait_vm(tags["b1"])
        a(f"v_lshlrev_b32 v{VB1}, 16, v{VB1}")
        a(f"v_and_b32 v{T+3}, 127, v{V_TID}")
        a(f"v_lshlrev_b32 v{T+3}, 2, v{T+3}")
        a(f"v_add_u32 v{T+3}, {L_B1}, v{T+3}")
        a(f"ds_write_b32 v{T+3}, v{VB1}")
        CS, B1 = AF, AF + 28
        a(f"v_cmp_eq_u32 vcc, 0, v{V_I}")
        a(f"s_lshl_b32 {sr(S_T0)}, {sr(S_WAVE)}, 7")
        a(f"s_add_u32 {sr(S_T0)}, {sr(S_T0)}, {L_CS}")
        a(f"v_lshl_add_u32 v{T}, v{V_G}, 4, {sr(S_T0)}")
        a(f"s_and_saveexec_b64 {sr(S_EX,2)}, vcc")
        a(f"ds_write_b128 v{T}, {vr(ACCC,4)}")
        a(f"ds_write_b128 v{T}, {vr(ACCC+4,4)} offset:64")
        a(f"s_mov_b64 exec, {sr(S_EX,2)}")
        RS, NM = T + 16, T + 18
        a(f"v_and_b32 v{T+1}, 3, v{V_I}")
        a(f"v_cmp_eq_u32 {sr(S_M1,2)}, 1, v{T+1}")
        a(f"v_cmp_eq_u32 {sr(S_M2,2)}, 2, v{T+1}")
        a(f"v_cmp_eq_u32 {sr(S_M3,2)}, 3, v{T+1}")
        a(f"v_lshrrev_b32 v{T+2}, 2, v{V_I}")
        a(f"v_lshl_add_u32 v{T+2}, v{T+2}, 4, v{V_I}")
        a(f"v_lshlrev_b32 v{T+2}, 2, v{T+2}")
        for tt in range(2):
            g0 = ACCG + 4 * tt
            a(f"v_cndmask_b32 v{T+3+tt}, v{g0}, v{g0+1}, {sr(S_M1,2)}")
            a(f"v_cndmask_b32 v{T+3+tt}, v{T+3+tt}, v{g0+2}, {sr(S_M2,2)}")
            a(f"v_cndmask_b32 v{T+3+tt}, v{T+3+tt}, v{g0+3}, {sr(S_M3,2)}")
        for tt in range(2):
            a(f"ds_bpermute_b32 v{T+5+tt}, v{T+2}, v{T+3+tt}")
        a("s_waitcnt lgkmcnt(0)")
        a("s_barrier")
        a(f"v_lshlrev_b32 v{T+1}, 4, v{V_G}")
        a(f"v_add_u32 v{T+1}, {L_CS}, v{T+1}")
        for t in range(7):
            a(f"ds_read_b128 {vr(CS+4*t,4)}, v{T+1} offset:{64*t}")
            a(f"ds_read_b128 {vr(B1+4*t,4)}, v{T+1} offset:{L_B1-L_CS+64*t}")
        inv = f2u(1.0 / 512)
        GV = T + 20
        for tt in range(2):
            s0 = ACCS + 4 * tt
            m, v, w = T + 8, T + 9, T + 10
            a(f"v_mul_f32 v{m}, {inv:#x}, v{s0}")
            a(f"v_mul_f32 v{v}, {inv:#x}, v{T+5+tt}")
            a(f"v_fma_f32 v{v}, -v{m}, v{m}, v{v}")
            a(f"v_max_f32 v{v}, 0, v{v}")
            a(f"v_cvt_pk_bf16_f32 v{w}, v{m}, v{v}")
            a(f"v_lshlrev_b32 v{m}, 16, v{w}")
            a(f"v_and_b32 v{v}, 0xffff0000, v{w}")
            a(f"v_add_f32 v{v}, {f2u(1e-5):#x}, v{v}")
            a(f"v_cvt_pk_bf16_f32 v{w}, v{v}, v{v}")
            a(f"v_and_b32 v{v}, 0xffff0000, v{w}")
            a(f"v_sqrt_f32 v{v}, v{v}")
            a(f"v_cvt_pk_bf16_f32 v{w}, v{v}, v{v}")
            a(f"v_and_b32 v{v}, 0xffff0000, v{w}")
            a(f"v_rcp_f32 v{RS+tt}, v{v}")
            a(f"v_mul_f32 v{NM+tt}, -v{m}, v{RS+tt}")
            a(f"v_cvt_pk_bf16_f32 v{w}, v{s0+1}, v{s0+1}")
            a(f"v_and_b32 v{w}, 0xffff0000, v{w}")
            a(f"v_mul_f32 v{w}, {f2u(-math.log2(math.e)):#x}, v{w}")
            a(f"v_exp_f32 v{w}, v{w}")
            a(f"v_add_f32 v{w}, 1.0, v{w}")
            a(f"v_rcp_f32 v{w}, v{w}")
            a(f"v_cvt_pk_bf16_f32 v{w}, v{w}, v{w}")
            a(f"v_and_b32 v{GV+tt}, 0xffff0000, v{w}")
        a(f"s_cmp_lg_u32 {sr(S_CB)}, 0")
        a("s_cbranch_scc1 L_nogate")
        a(f"s_lshl_b32 {sr(S_T0)}, {sr(S_RB)}, 2")
        a(f"s_add_u32 {sr(S_T0)}, {sr(S_T0)}, {sr(S_WAVE)}")
        a(f"s_lshl_b32 {sr(S_T0)}, {sr(S_T0)}, 7")
        a(f"s_add_u32 {sr(S_T0)}, {sr(S_T0)}, {WS_G}")
        a(f"v_lshlrev_b32 v{T+1}, 2, v{V_I}")
        a(f"v_cmp_gt_u32 vcc, 16, v{V_L}")
        a(f"s_and_saveexec_b64 {sr(S_EX,2)}, vcc")
        a(f"buffer_store_dword v{GV}, v{T+1}, {sr(SRD_WS,4)}, {sr(S_T0)} offen sc1", count=False)
        a(f"buffer_store_dword v{GV+1}, v{T+1}, {sr(SRD_WS,4)}, {sr(S_T0)} offen offset:64 sc1", count=False)
        a(f"s_mov_b64 exec, {sr(S_EX,2)}")
        a.label("L_nogate")

        c1 = -2.0 * math.log2(math.e) * math.sqrt(2.0 / math.pi)
        c2 = c1 * 0.044715
        VC1, VONE = T + 22, T + 24
        a(f"v_mov_b32 v{VC1}, {f2u(c1):#x}")
        a(f"v_mov_b32 v{VC1+1}, {f2u(c1):#x}")
        a(f"v_mov_b32 v{VONE}, 1.0")
        a(f"v_mov_b32 v{VONE+1}, 1.0")
        a(f"s_mov_b32 {sr(S_C2)}, {f2u(c2):#x}")
        a(f"s_mov_b32 {sr(S_C2+1)}, {f2u(c2):#x}")
        a(f"s_lshl_b32 {sr(S_T0)}, {sr(S_RB)}, 3")
        a(f"s_lshl_b32 {sr(S_T1)}, {sr(S_WAVE)}, 1")
        a(f"s_add_u32 {sr(S_T0)}, {sr(S_T0)}, {sr(S_T1)}")
        a(f"s_lshl_b32 {sr(S_T0)}, {sr(S_T0)}, 3")
        a(f"s_lshr_b32 {sr(S_T1)}, {sr(S_CB)}, 1")
        a(f"s_add_u32 {sr(S_T0)}, {sr(S_T0)}, {sr(S_T1)}")
        a(f"s_mul_i32 {sr(S_T0)}, {sr(S_T0)}, 7168")
        a(f"s_add_u32 {sr(S_T0)}, {sr(S_T0)}, {WS_H}")
        a(f"s_and_b32 {sr(S_T1)}, {sr(S_CB)}, 1")
        a(f"s_mul_i32 {sr(S_T2)}, {sr(S_T1)}, 3072")
        a(f"s_add_u32 {sr(S_T4)}, {sr(S_T0)}, {sr(S_T2)}")
        a(f"s_add_u32 {sr(S_T5)}, {sr(S_T4)}, {8*7168}")
        a(f"s_lshl_b32 {sr(S_T2)}, {sr(S_T1)}, 3")
        a(f"s_add_u32 {sr(S_T6)}, {sr(S_T0)}, {sr(S_T2)}")
        a(f"s_add_u32 {sr(S_T6)}, {sr(S_T6)}, 6144")
        a(f"s_add_u32 {sr(S_T7)}, {sr(S_T6)}, {8*7168}")
        VH = T + 26
        a(f"v_lshlrev_b32 v{VH}, 4, v{V_L}")
        a("s_waitcnt lgkmcnt(0)")
        self.stamp("stats")
        W = T + 28
        OUTR = T + 60
        nbuf = 0
        for tt in range(2):
            for P in range(4):
                tiles = (2 * P, 2 * P + 1) if P < 3 else (6,)
                ob = OUTR + 4 * (nbuf & 1)
                nbuf += 1
                jobs = [(t, h) for t in tiles for h in range(2)]
                xs = [W + 6 * j for j in range(len(jobs))]
                bc = lambda reg: reg
                for j, (t, h) in enumerate(jobs):
                    x = xs[j]
                    a(f"v_pk_fma_f32 {vr(x,2)}, {vr(CS+4*t+2*h,2)}, {vr(NM,2)}, {vr(B1+4*t+2*h,2)} op_sel:[0,{tt},0] op_sel_hi:[1,{tt},1]")
                for j, (t, h) in enumerate(jobs):
                    x = xs[j]
                    a(f"v_pk_fma_f32 {vr(x,2)}, {vr(acc(t,tt)+2*h,2)}, {vr(RS,2)}, {vr(x,2)} op_sel:[0,{tt},0] op_sel_hi:[1,{tt},1]")
                for j in range(len(jobs)):
                    x = xs[j]
                    a(f"v_pk_mul_f32 {vr(x+2,2)}, {vr(x,2)}, {vr(x,2)}")
                for j in range(len(jobs)):
                    x = xs[j]
                    a(f"v_pk_fma_f32 {vr(x+2,2)}, {vr(x+2,2)}, {sr(S_C2,2)}, {vr(VC1,2)}")
                for j in range(len(jobs)):
                    x = xs[j]
                    a(f"v_pk_mul_f32 {vr(x+2,2)}, {vr(x+2,2)}, {vr(x,2)}")
                for j in range(len(jobs)):
                    x = xs[j]
                    a(f"v_exp_f32 v{x+2}, v{x+2}")
                    a(f"v_exp_f32 v{x+3}, v{x+3}")
                for j in range(len(jobs)):
                    x = xs[j]
                    a(f"v_pk_add_f32 {vr(x+2,2)}, {vr(x+2,2)}, {vr(VONE,2)}")
                for j in range(len(jobs)):
                    x = xs[j]
                    a(f"v_rcp_f32 v{x+2}, v{x+2}")
                    a(f"v_rcp_f32 v{x+3}, v{x+3}")
                for j in range(len(jobs)):
                    x = xs[j]
                    a(f"v_pk_mul_f32 {vr(x,2)}, {vr(x,2)}, {vr(x+2,2)}")
                for j in range(len(jobs)):
                    x = xs[j]
                    a(f"v_cvt_pk_bf16_f32 v{ob+j}, v{x}, v{x+1}")
                if P < 3:
                    so = S_T4 if tt == 0 else S_T5
                    a(f"buffer_store_dwordx4 {vr(ob,4)}, v{VH}, {sr(SRD_WS,4)}, {sr(so)} offen offset:{1024*P} sc1")
                else:
                    so = S_T6 if tt == 0 else S_T7
                    a(f"buffer_store_dwordx2 {vr(ob,2)}, v{VH}, {sr(SRD_WS,4)}, {sr(so)} offen sc1")
        self.stamp("gelu")

        a(f"s_lshl_b32 {sr(S_T0)}, {sr(S_WAVE)}, 11")
        a(f"s_add_u32 {sr(S_T0)}, {sr(S_T0)}, {L_UTS}")
        a(f"v_lshrrev_b32 v{T+1}, 2, v{V_I}")
        a(f"v_lshl_add_u32 v{T+1}, v{V_G}, 3, v{T+1}")
        a(f"v_lshlrev_b32 v{T+1}, 6, v{T+1}")
        a(f"v_and_b32 v{T+2}, 3, v{V_I}")
        a(f"v_lshl_add_u32 v{T+1}, v{T+2}, 3, v{T+1}")
        a(f"v_add_u32 v{T+1}, {sr(S_T0)}, v{T+1}")
        a("s_waitcnt lgkmcnt(0)")
        for ct in range(2):
            a(f"ds_read_b64_tr_b16 {vr(T+4+4*ct,2)}, v{T+1} offset:{32*ct}")
            a(f"ds_read_b64_tr_b16 {vr(T+6+4*ct,2)}, v{T+1} offset:{32*ct+256}")
        a(f"v_lshlrev_b32 v{T+2}, 12, v{V_I}")
        a(f"v_lshl_add_u32 v{T+2}, v{V_G}, 4, v{T+2}")
        a(f"s_lshl_b32 {sr(S_T0)}, {sr(S_CB)}, 17")
        a(f"s_lshl_b32 {sr(S_T1)}, {sr(S_RB)}, 8")
        a(f"s_add_u32 {sr(S_T0)}, {sr(S_T0)}, {sr(S_T1)}")
        a(f"s_lshl_b32 {sr(S_T1)}, {sr(S_WAVE)}, 6")
        a(f"s_add_u32 {sr(S_T0)}, {sr(S_T0)}, {sr(S_T1)}")
        a(f"s_add_u32 {sr(S_T0)}, {sr(S_T0)}, {WS_UT}")
        a(f"s_add_u32 {sr(S_T1)}, {sr(S_T0)}, {16*4096}")
        a("s_waitcnt lgkmcnt(0)")
        a(f"buffer_store_dwordx4 {vr(T+4,4)}, v{T+2}, {sr(SRD_WS,4)}, {sr(S_T0)} offen sc1")
        a(f"buffer_store_dwordx4 {vr(T+8,4)}, v{T+2}, {sr(SRD_WS,4)}, {sr(S_T1)} offen sc1")
        self.stamp("uT")

    def build(self):
        a = self.a
        o = self.o
        self.prologue()
        self.phase_a()
        if "B" in o["phases"]:
            self.phase_b()
        if "C" in o["phases"]:
            self.phase_c()
        a("s_waitcnt vmcnt(0) lgkmcnt(0)")
        if o.get("clk"):
            a("s_memtime s[90:91]")
            a("s_memrealtime s[86:87]")
            a("s_waitcnt lgkmcnt(0)")
            a("s_sub_u32 s90, s90, s98")
            a("s_sub_u32 s86, s86, s100")
            a(f"s_and_b32 {sr(S_T0)}, {sr(S_WG)}, 0x3f")
            a(f"s_or_b32 {sr(S_T0)}, {sr(S_T0)}, {sr(S_WAVE)}")
            a(f"s_cmp_lg_u32 {sr(S_T0)}, 0")
            a("s_cbranch_scc1 L_noclk")
            a(f"s_lshr_b32 {sr(S_T0)}, {sr(S_WG)}, 6")
            a(f"s_lshl_b32 {sr(S_T0)}, {sr(S_T0)}, 4")
            a(f"s_add_u32 {sr(S_T0)}, {sr(S_T0)}, 8")
            a(f"v_mov_b32 v4, {sr(S_T0)}")
            a("v_mov_b32 v6, s90")
            a("v_mov_b32 v7, s86")
            a("v_mov_b32 v8, s100")
            a(f"global_store_dwordx3 v4, v[6:8], {sr(P_DBG,2)} offset:0", count=False)
            a("s_waitcnt vmcnt(0)")
            a.label("L_noclk")
        self.stamp("end")
        self.stamp_flush()
        a.label("L_end")
        a("s_endpgm")
        body = a.text()
        head = open("gated_mix__ssm_conv_s4__mixer_channel_mlp__prompt.s.ref").read().split("; Override launch")[0]
        head += f"; @launch grid=(256,1,1) block=(256,1,1) lds={LDS_TOTAL}\n"
        pf = (8 * a.icount // 64 + 127) // 128 + 1
        txt = head + f""".amdgcn_target "amdgcn-amd-amdhsa--gfx950"
.set PF_LINES, {pf}
.text
.globl {KNAME}
.p2align 8
.type {KNAME},@function
{KNAME}:
{body}.section .rodata,"a"
.p2align 6
.amdhsa_kernel {KNAME}
  .amdhsa_next_free_vgpr 512
  .amdhsa_next_free_sgpr 102
  .amdhsa_accum_offset 256
  .amdhsa_group_segment_fixed_size 0
  .amdhsa_kernarg_size 144
  .amdhsa_user_sgpr_count 2
  .amdhsa_user_sgpr_kernarg_segment_ptr 1
  .amdhsa_system_sgpr_workgroup_id_x 1
.end_amdhsa_kernel
"""
        return txt


if __name__ == "__main__":
    import argparse
    ap = argparse.ArgumentParser()
    ap.add_argument("-o", default="k.s")
    ap.add_argument("--phases", default="ABC")
    ap.add_argument("--stamps", action="store_true")
    ap.add_argument("--fine", action="store_true")
    ap.add_argument("--exp", default="")
    ap.add_argument("--dump", default="")
    ap.add_argument("--clk", action="store_true")
    args = ap.parse_args()
    opts = dict(phases=args.phases, stamps=args.stamps, fine=args.fine, exp=set(args.exp.split(',')), dump=args.dump, clk=args.clk)
    from gen_bc import attach
    attach(Gen)
    g = Gen(opts)
    txt = g.build()
    open(args.o, "w").write(txt)
    if args.stamps:
        import json
        json.dump(opts["stamp_names"], open(args.o + ".stamps.json", "w"))
    print(f"wrote {args.o}: {g.a.icount} instructions, {g.a.nops_added} auto nops, {len(txt)} bytes")
```

```python
from asmlib import vr, ar, sr
from gen2 import *


def dump_lds(self, name, base, nbytes):
    if self.o.get("dump") != name:
        return
    a = self.a
    a("s_waitcnt vmcnt(0) lgkmcnt(0)")
    a("s_barrier")
    a(f"v_lshlrev_b32 v250, 4, v{V_TID}")
    a(f"s_mul_i32 {sr(S_T0)}, {sr(S_WG)}, 65536")
    a(f"s_add_u32 {sr(S_T0)}, {sr(S_T0)}, {WS_DUMP}")
    for off in range(0, nbytes, 4096):
        a(f"v_add_u32 v251, {base + off}, v250")
        a("ds_read_b128 v[244:247], v251")
        a("s_waitcnt lgkmcnt(0)")
        a(f"buffer_store_dwordx4 v[244:247], v250, {sr(SRD_WS,4)}, {sr(S_T0)} offen", count=False)
        a(f"s_add_u32 {sr(S_T0)}, {sr(S_T0)}, 4096")
        a("s_waitcnt vmcnt(0)")
    a("s_barrier")


def phase_b(self):
    o = self.o
    late = self.late
    a = Paced(self.a, late, 10 ** 9)
    R = 32
    FA, FB, D0, D1 = 64, 128, R + 4, R + 8
    VA_, VB_ = R + 12, R + 13
    a(f"s_lshr_b32 {sr(S_T0)}, {sr(S_WAVE)}, 1")
    a(f"s_mul_i32 {sr(S_T0)}, {sr(S_T0)}, {32*TROW}")
    a(f"v_mul_u32_u24 v{VA_}, {TROW}, v{V_I}")
    a(f"v_lshl_add_u32 v{VA_}, v{V_G}, 4, v{VA_}")
    a(f"v_add_u32 v{VA_}, {sr(S_T0)}, v{VA_}")
    a(f"s_and_b32 {sr(S_T1)}, {sr(S_WAVE)}, 1")
    a(f"s_mul_i32 {sr(S_T1)}, {sr(S_T1)}, {16*TROW}")
    a(f"s_add_u32 {sr(S_T1)}, {sr(S_T1)}, {L_LO}")
    a(f"v_add_u32 v{VB_}, {sr(S_T1)}, v{VA_}")
    for k in range(8):
        a(f"v_mov_b32 v{D0+k}, 0")
    a.wait_vm(self.tag_pubA)
    a("s_waitcnt lgkmcnt(0)")
    a("s_barrier")
    a.asm(f"s_lshl_b32 {sr(S_T0)}, {sr(S_RB)}, 4")
    a.asm(f"s_add_u32 {sr(S_T0)}, {sr(S_T0)}, {sr(S_CB)}")
    a.asm(f"s_lshl_b32 {sr(S_T0)}, {sr(S_T0)}, 5")
    a.asm(f"s_add_u32 {sr(S_T0)}, {sr(S_T0)}, {WS_FLAGA}")
    self.flag_store(S_T0, R + 30)
    self.stamp("flagA")
    a.period = 17
    tg = {}

    def kmf(k2):
        a.wait_lg(tg[k2])
        a(f"{MF} {vr(D0,4)}, {vr(FA+8*k2,4)}, {vr(FB+4*k2,4)}, {vr(D0,4)}")
        a(f"{MF} {vr(D1,4)}, {vr(FA+8*k2+4,4)}, {vr(FB+4*k2,4)}, {vr(D1,4)}")

    for kap in range(8):
        a(f"ds_read_b128 {vr(FB+4*kap,4)}, v{VB_} offset:{64*kap}")
        a(f"ds_read_b128 {vr(FA+8*kap,4)}, v{VA_} offset:{L_HI + 64*kap}")
        tg[kap] = a(f"ds_read_b128 {vr(FA+8*kap+4,4)}, v{VA_} offset:{L_HI + 16*TROW + 64*kap}")
        if kap >= 3:
            kmf(kap - 3)
    J, SH, AD, A0, A1, A2_, TB = R + 14, R + 15, R + 16, R + 17, R + 18, R + 19, R + 20
    a(f"s_and_b32 {sr(S_T1)}, {sr(S_WAVE)}, 1")
    a(f"s_lshl_b32 {sr(S_T1)}, {sr(S_T1)}, 4")
    a(f"v_add_u32 v{J}, {sr(S_T1)}, v{V_I}")
    a(f"s_lshr_b32 {sr(S_T0)}, {sr(S_WAVE)}, 1")
    a(f"s_lshl_b32 {sr(S_T0)}, {sr(S_T0)}, 11")
    a(f"s_add_u32 {sr(S_T4)}, {sr(S_T0)}, {L_TAB}")
    a(f"v_subrev_u32 v{SH}, 1, v{V_G}")
    a(f"v_max_i32 v{SH}, 0, v{SH}")
    a(f"v_sub_u32 v{SH}, 3, v{SH}")
    a(f"v_lshlrev_b32 v{A0}, v{SH}, v{J}")
    a(f"v_mov_b32 v{AD}, 0")
    for gval, add in ((1, 4), (2, 256), (3, 384)):
        a(f"v_mov_b32 v{TB}, {add}")
        a(f"v_cmp_eq_u32 vcc, {gval}, v{V_G}")
        a(f"v_cndmask_b32 v{AD}, v{AD}, v{TB}, vcc")
    a(f"v_add_u32 v{A0}, v{A0}, v{AD}")
    a(f"v_lshl_add_u32 v{A0}, v{A0}, 1, {sr(S_T4)}")
    a(f"v_mov_b32 v{A1}, 4")
    a(f"v_mov_b32 v{TB}, 128")
    a(f"v_cndmask_b32 v{A1}, v{A1}, v{TB}, vcc")
    a(f"v_add_u32 v{A1}, v{A1}, v{A0}")
    for k2 in range(5, 8):
        kmf(k2)
    a(f"v_mov_b32 v{A2_}, 1600")
    a(f"v_lshlrev_b32 v{TB}, 1, v{J}")
    a(f"v_add_u32 v{TB}, 1024, v{TB}")
    a(f"v_cmp_eq_u32 vcc, 0, v{V_G}")
    a(f"v_cndmask_b32 v{A2_}, v{A2_}, v{TB}, vcc")
    a(f"v_lshl_add_u32 v{TB}, v{V_G}, 8, v{J}")
    a(f"v_mov_b32 v{AD}, 1280")
    a(f"v_cmp_eq_u32 vcc, 0x100, v{TB}")
    a(f"v_cndmask_b32 v{A2_}, v{A2_}, v{AD}, vcc")
    a(f"v_add_u32 v{A2_}, {sr(S_T4)}, v{A2_}")
    Z = R + 28
    for k in range(4):
        a(f"v_mov_b32 v{Z+k}, 0")
    a(f"v_mov_b32 v{TB}, {sr(S_T4)}")
    a(f"ds_write_b16 v{TB}, v{Z} offset:{2*TAB_ZERO}")
    a(f"v_and_b32 v{TB}, 15, v{V_L}")
    a(f"v_lshrrev_b32 v{AD}, 1, v{TB}")
    a(f"v_mul_u32_u24 v{AD}, {KCS}, v{AD}")
    a(f"v_and_b32 v{TB}, 1, v{TB}")
    a(f"v_lshl_add_u32 v{AD}, v{TB}, 4, v{AD}")
    a(f"v_add_u32 v{AD}, {L_KC + 4096}, v{AD}")
    a(f"ds_write_b128 v{AD}, {vr(Z,4)}")
    a(f"v_lshrrev_b32 v{AD}, 5, v{V_L}")
    a(f"v_mul_u32_u24 v{AD}, {UBS}, v{AD}")
    a(f"v_and_b32 v{TB}, 31, v{V_L}")
    a(f"v_lshl_add_u32 v{AD}, v{TB}, 4, v{AD}")
    a(f"v_add_u32 v{AD}, {L_UB}, v{AD}")
    a(f"ds_write_b128 v{AD}, {vr(Z,4)}")
    PKD = R + 22
    a(f"v_cvt_pk_bf16_f32 v{PKD}, v{D0}, v{D0+1}")
    a(f"v_cvt_pk_bf16_f32 v{PKD+1}, v{D0+2}, v{D0+3}")
    a(f"v_cvt_pk_bf16_f32 v{PKD+2}, v{D1}, v{D1+1}")
    a(f"v_cvt_pk_bf16_f32 v{PKD+3}, v{D1+2}, v{D1+3}")
    a(f"ds_write_b32 v{A0}, v{PKD}")
    a(f"ds_write_b32 v{A1}, v{PKD+1}")
    a(f"ds_write_b16 v{A2_}, v{PKD+2}")
    a(f"ds_write_b16_d16_hi v{A2_}, v{PKD+2} offset:64")
    a(f"ds_write_b16 v{A2_}, v{PKD+3} offset:128")
    a(f"ds_write_b16_d16_hi v{A2_}, v{PKD+3} offset:192")
    GA = 64
    LI, TX, TY = 76, 77, 78
    a(f"v_lshlrev_b32 v{LI}, 3, v{V_TID}")
    a(f"v_sub_u32 v{LI}, 2047, v{LI}")
    for i in range(0, 12, 2):
        a(f"v_subrev_u32 v{GA+i}, {i}, v{LI}")
        a(f"v_subrev_u32 v{GA+i+1}, {i+1}, v{LI}")
        a(f"v_max_i32 v{TX}, 128, v{GA+i}")
        a(f"v_max_i32 v{TY}, 128, v{GA+i+1}")
        a(f"v_cvt_f32_u32 v{TX}, v{TX}")
        a(f"v_cvt_f32_u32 v{TY}, v{TY}")
        a(f"v_cvt_pk_bf16_f32 v{TX}, v{TX}, v{TY}")
        a(f"v_lshrrev_b32 v{TY}, 16, v{TX}")
        a(f"v_and_b32 v{TX}, 0xffff, v{TX}")
        a(f"v_subrev_u32 v{TX}, 0x4280, v{TX}")
        a(f"v_subrev_u32 v{TY}, 0x4280, v{TY}")
        a(f"v_min_u32 v{GA+i}, v{GA+i}, v{TX}")
        a(f"v_min_u32 v{GA+i+1}, v{GA+i+1}, v{TY}")
    a(f"v_mov_b32 v{TX}, {TAB_ZERO}")
    a(f"v_cmp_eq_u32 vcc, 255, v{V_TID}")
    for i in (8, 9, 10):
        a(f"v_cndmask_b32 v{GA+i}, v{GA+i}, v{TX}, vcc")
    a(f"s_mov_b32 {sr(S_T0)}, {L_TAB}")
    for i in range(11):
        a(f"v_lshl_add_u32 v{GA+i}, v{GA+i}, 1, {sr(S_T0)}")
    a("s_waitcnt lgkmcnt(0)")
    a("s_barrier")
    self.stamp("ktab")
    dump_lds(self, "tab", L_TAB, 4096)

    S_HIM = S_T7
    a(f"s_mov_b32 {sr(S_HIM)}, 0xffff0000")
    DD, EE, HH = 80, 96, 112
    VK0, VK2 = 128, 129
    VF, VFV, UR = 132, 133, 136
    a(f"v_lshlrev_b32 v{VK0}, 4, v{V_TID}")
    a(f"v_add_u32 v{VK0}, {L_KC}, v{VK0}")
    tgs = {}
    for c in range(2):
        d, hh = DD + 8 * c, HH + 8 * c
        for i in range(11):
            if i & 1:
                tgs[c] = a(f"ds_read_u16_d16_hi v{hh + i//2}, v{GA+i} offset:{2048*c}")
            else:
                tgs[c] = a(f"ds_read_u16 v{d + i//2}, v{GA+i} offset:{2048*c}")
    a.asm(f"s_lshr_b32 {sr(S_T0)}, {sr(S_WG)}, 4")
    a.asm(f"s_lshl_b32 {sr(S_T0)}, {sr(S_T0)}, 5")
    a.asm(f"v_lshlrev_b32 v{VF}, 9, v{V_I}")
    a.asm(f"v_add_u32 v{VF}, {sr(S_T0)}, v{VF}")
    a.asm(f"s_lshr_b32 {sr(S_T0)}, {sr(S_TB)}, 1")
    a.asm(f"s_lshl_b32 {sr(S_T0)}, {sr(S_T0)}, 9")
    a.asm(f"v_lshlrev_b32 v{VFV}, 5, v{V_I}")
    a.asm(f"v_add_u32 v{VFV}, {sr(S_T0)}, v{VFV}")
    a.asm(f"v_and_b32 v{VF+2}, 1, v{V_G}")
    a.asm(f"v_cmp_eq_u32 vcc, 1, v{VF+2}")
    a.asm(f"v_cndmask_b32 v{VF}, v{VF}, v{VFV}, vcc")
    a.asm(f"v_add_u32 v{VF}, {WS_FLAGA}, v{VF}")
    for c in range(2):
        d, e, hh = DD + 8 * c, EE + 8 * c, HH + 8 * c
        a.wait_lg(tgs[c])
        for k in range(5):
            a(f"v_and_or_b32 v{d+k}, v{hh+k}, {sr(S_HIM)}, v{d+k}")
        for k in range(4):
            a(f"v_alignbit_b32 v{e+k}, v{d+k+1}, v{d+k}, 16")
        a(f"v_alignbit_b32 v{e+4}, v{d+5}, v{d+4}, 16")
        base = c * 4 * KCS
        a(f"ds_write_b128 v{VK0}, {vr(d,4)} offset:{base}")
        a(f"ds_write_b128 v{VK0}, {vr(e,4)} offset:{base + KCS}")
        a(f"v_add_u32 v{VK2}, {base + 2*KCS}, v{VK0}")
        a(f"ds_write2_b32 v{VK2}, v{d+1}, v{d+2} offset0:0 offset1:1")
        a(f"ds_write2_b32 v{VK2}, v{d+3}, v{d+4} offset0:2 offset1:3")
        a(f"v_add_u32 v{VK2+1}, {base + 3*KCS}, v{VK0}")
        a(f"ds_write2_b32 v{VK2+1}, v{e+1}, v{e+2} offset0:0 offset1:1")
        a(f"ds_write2_b32 v{VK2+1}, v{e+3}, v{e+4} offset0:2 offset1:3")
        if c == 0:
            tag_fu = self.flag_load(VFV, VF)
    self.stamp("kcopies")
    CA = 32
    TA = (64, 96)
    VT, VU, B_, S_ = 24, 25, 26, 27
    a(f"s_lshr_b32 {sr(S_T0)}, {sr(S_WAVE)}, 1")
    a(f"s_and_b32 {sr(S_T1)}, {sr(S_WAVE)}, 1")
    a(f"v_sub_u32 v{S_}, 3, v{V_I}")
    a(f"v_and_b32 v{S_}, 3, v{S_}")
    a(f"v_sub_u32 v{B_}, 2031, v{V_I}")
    a(f"v_lshl_add_u32 v{B_}, v{V_G}, 3, v{B_}")
    a(f"v_sub_u32 v{B_}, v{B_}, v{S_}")
    a(f"v_lshlrev_b32 v{B_}, 1, v{B_}")
    a(f"v_mul_u32_u24 v{S_}, {KCS}, v{S_}")
    a(f"v_add_u32 v{VT}, v{B_}, v{S_}")
    a(f"s_mul_i32 {sr(S_T2)}, {sr(S_T0)}, {4*KCS}")
    a(f"s_lshl_b32 {sr(S_T4)}, {sr(S_T1)}, 8")
    a(f"s_sub_u32 {sr(S_T2)}, {sr(S_T2)}, {sr(S_T4)}")
    a(f"s_add_u32 {sr(S_T2)}, {sr(S_T2)}, {L_KC - 64*59}")
    a(f"v_add_u32 v{VT}, {sr(S_T2)}, v{VT}")
    a(f"v_lshlrev_b32 v{VU}, 5, v{V_I}")
    a(f"v_lshl_add_u32 v{VU}, v{V_G}, 4, v{VU}")
    a(f"s_mul_i32 {sr(S_T2)}, {sr(S_T0)}, {UBS}")
    a(f"s_sub_u32 {sr(S_T2)}, {sr(S_T2)}, {sr(S_T4)}")
    a(f"s_add_u32 {sr(S_T2)}, {sr(S_T2)}, {L_UB + 512 - 32 - 64*3}")
    a(f"v_add_u32 v{VU}, {sr(S_T2)}, v{VU}")
    for k in range(32):
        a(f"v_mov_b32 v{CA+k}, 0")
    late.drain()
    a.period = 10 ** 9
    self.stamp("w2done")
    self.flag_check("U", VFV, VF, tag_fu, wave0=True)
    a("s_barrier")
    self.stamp("flagU")
    a(f"s_lshl_b32 {sr(S_T0)}, {sr(S_WG)}, 13")
    a(f"s_lshl_b32 {sr(S_T1)}, {sr(S_WAVE)}, 11")
    a(f"s_add_u32 {sr(S_T0)}, {sr(S_T0)}, {sr(S_T1)}")
    a(f"s_add_u32 {sr(S_T0)}, {sr(S_T0)}, {WS_UT}")
    a(f"v_lshlrev_b32 v{VF}, 4, v{V_L}")
    a(f"buffer_load_dwordx4 {vr(UR,4)}, v{VF}, {sr(SRD_WS,4)}, {sr(S_T0)} offen sc1")
    tag_ur = a(f"buffer_load_dwordx4 {vr(UR+4,4)}, v{VF}, {sr(SRD_WS,4)}, {sr(S_T0)} offen offset:1024 sc1")
    a(f"s_lshr_b32 {sr(S_T0)}, {sr(S_WAVE)}, 1")
    a(f"s_mul_i32 {sr(S_T0)}, {sr(S_T0)}, {UBS}")
    a(f"s_and_b32 {sr(S_T1)}, {sr(S_WAVE)}, 1")
    a(f"s_lshl_b32 {sr(S_T1)}, {sr(S_T1)}, 11")
    a(f"s_add_u32 {sr(S_T0)}, {sr(S_T0)}, {sr(S_T1)}")
    a(f"s_add_u32 {sr(S_T0)}, {sr(S_T0)}, {L_UB + 512}")
    a(f"v_add_u32 v{VF}, {sr(S_T0)}, v{VF}")
    for p in range(4):
        a(f"s_add_u32 {sr(S_T0)}, {sr(S_WAVE)}, {p+1}")
        a(f"s_and_b32 {sr(S_T0)}, {sr(S_T0)}, 3")
        a(f"s_lshl_b32 {sr(S_T1)}, {sr(S_TB)}, 2")
        a(f"s_add_u32 {sr(S_T0)}, {sr(S_T0)}, {sr(S_T1)}")
        a(f"s_lshl_b32 {sr(S_T0)}, {sr(S_T0)}, 3")
        a(f"s_lshl_b32 {sr(S_T1)}, {sr(S_WAVE)}, 1")
        a(f"s_add_u32 {sr(S_T0)}, {sr(S_T0)}, {sr(S_T1)}")
        a(f"s_mul_i32 {sr(S_T0)}, {sr(S_T0)}, 7168")
        a(f"s_add_u32 {sr(S_HB+p)}, {sr(S_T0)}, {WS_H}")
    a.wait_vm(tag_ur)
    a(f"ds_write_b128 v{VF}, {vr(UR,4)}")
    a(f"ds_write_b128 v{VF}, {vr(UR+4,4)} offset:1024")
    a("s_waitcnt lgkmcnt(0)")
    a("s_barrier")
    self.stamp("uTin")

    HB = 128
    VH = 30
    a(f"v_lshlrev_b32 v{VH}, 4, v{V_L}")
    self.ht = {}

    def h_load(p, st):
        hb = HB + (p & 1) * 56 + 4 * st
        return [lambda: a(f"s_add_u32 {sr(S_L0)}, {sr(S_HB+p)}, {sr(S_SIG[st])}"),
                lambda: self.ht.__setitem__((p, st), a(
                    f"buffer_load_dwordx4 {vr(hb,4)}, v{VH}, {sr(SRD_WS,4)}, {sr(S_L0)} offen sc1"))]
    self.h_load, self.HB, self.VH = h_load, HB, VH

    UBV = 240
    def ub_reg(rho, k):
        if rho & 1:
            return ar(224 + 4 * k, 4)
        return vr(self.UB_EVEN[k], 4)
    self.UB_EVEN = [4, 8, 12, 16, 20, 240, 244, 248]

    def conv_reads(rho):
        ta = TA[rho & 1]
        ops = []
        order = [0, 1, 2, 3, 4, 5, 6, 7]
        for k in order:
            off = 64 * ((7 - k) * 8 + (3 - rho))
            ops.append(lambda k=k, off=off: a(f"ds_read_b64 {vr(ta+4*k,2)}, v{VT} offset:{off}"))
            ops.append(lambda k=k, off=off: a(f"ds_read_b64 {vr(ta+4*k+2,2)}, v{VT} offset:{off+8}"))
            ops.append(lambda k=k: ctag.__setitem__((rho, k), a(f"ds_read_b128 {ub_reg(rho,k)}, v{VU} offset:{512*k + 64*(3-rho)}")))
        return ops

    ctag = {}
    hfill = Fill()
    for p in range(2):
        for st in range(14):
            hfill.add(h_load(p, st))
            hfill.q += [None] * 3
    VR = 26
    a(f"s_lshl_b32 {sr(S_T0)}, {sr(S_WAVE)}, 13")
    a(f"s_add_u32 {sr(S_T0)}, {sr(S_T0)}, {L_RED}")
    a(f"v_lshl_add_u32 v{VR}, v{V_I}, 2, v{V_G}")
    a(f"v_lshl_add_u32 v{VR}, v{VR}, 4, {sr(S_T0)}")
    for op in conv_reads(0):
        op()
    for rho in range(4):
        ta = TA[rho & 1]
        nxt = conv_reads(rho + 1) if rho < 3 else []
        n = 0
        for t in range(8):
            a.wait_lg(ctag[(rho, t)])
            for i in range(t + 1):
                a(f"{MF} {vr(CA+4*t,4)}, {vr(ta+4*i,4)}, {ub_reg(rho, t-i)}, {vr(CA+4*t,4)}")
                n += 1
                if nxt and n % 3 != 0:
                    nxt.pop(0)()
                if rho == 3 and t >= 3 and i == 2:
                    a(f"ds_write_b128 v{VR}, {vr(CA+4*(t-3),4)} offset:{1024*(t-3)}")
                hfill.step()
        assert not nxt
    for t in (5, 6, 7):
        a(f"ds_write_b128 v{VR}, {vr(CA+4*t,4)} offset:{1024*t}")
    hfill.drain()
    self.stamp("conv")

    VR, YR = 24, 64
    a(f"s_lshl_b32 {sr(S_T0)}, {sr(S_WAVE)}, 11")
    a(f"s_add_u32 {sr(S_T0)}, {sr(S_T0)}, {L_RED}")
    a(f"v_lshl_add_u32 v{VR+1}, v{V_L}, 4, {sr(S_T0)}")
    a(f"s_lshl_b32 {sr(S_T4)}, {sr(S_WG)}, 13")
    a(f"s_lshl_b32 {sr(S_T1)}, {sr(S_WAVE)}, 11")
    a(f"s_add_u32 {sr(S_T4)}, {sr(S_T4)}, {sr(S_T1)}")
    a(f"s_add_u32 {sr(S_T4)}, {sr(S_T4)}, {WS_YT}")
    a(f"v_lshlrev_b32 v{VR+2}, 4, v{V_L}")
    a("s_waitcnt lgkmcnt(0)")
    a("s_barrier")
    for tt in range(2):
        for src in range(4):
            a(f"ds_read_b128 {vr(YR + 16*tt + 4*src,4)}, v{VR+1} offset:{8192*src + 1024*tt}")
    for tt in range(2):
        y = YR + 16 * tt
        a(f"s_waitcnt lgkmcnt({4*(1-tt)})")
        for r in range(4):
            a(f"v_add_f32 v{y+r}, v{y+r}, v{y+4+r}")
            a(f"v_add_f32 v{y+8+r}, v{y+8+r}, v{y+12+r}")
        for r in range(4):
            a(f"v_cvt_pk_bf16_f32 v{y+4+r}, v{y+r}, v{y+8+r}")
        self.tag_pubY = a(f"buffer_store_dwordx4 {vr(y+4,4)}, v{VR+2}, {sr(SRD_WS,4)}, {sr(S_T4)} offen offset:{1024*tt} sc1")
    self.stamp("ystore")


def phase_c(self):
    a, o = self.a, self.o
    HB, ht, h_load = self.HB, self.ht, self.h_load
    ACC = 32
    EU, EY, ED, EB, EG = 96, 104, 112, 240, 248
    OM = 249
    VE, VF, VFV, VRW = 4, 8, 9, 10
    ZR = 12
    a(f"s_lshl_b32 {sr(S_T0)}, {sr(S_TB)}, 6")
    a(f"s_lshl_b32 {sr(S_T1)}, {sr(S_WAVE)}, 4")
    a(f"s_add_u32 {sr(S_T0)}, {sr(S_T0)}, {sr(S_T1)}")
    a(f"v_add_u32 v{VE}, {sr(S_T0)}, v{V_I}")
    a(f"s_lshl_b32 {sr(S_T1)}, {sr(S_DB)}, 6")
    a(f"v_lshl_add_u32 v{VE+1}, v{V_G}, 2, {sr(S_T1)}")
    a(f"v_lshlrev_b32 v{VE+2}, 10, v{VE}")
    a(f"v_lshl_add_u32 v{VE+2}, v{VE+1}, 1, v{VE+2}")
    a(f"v_lshlrev_b32 v{VE+3}, 12, v{VE+1}")
    a(f"v_lshl_add_u32 v{VE+3}, v{VE}, 2, v{VE+3}")
    a(f"v_add_u32 v{VE+3}, {WS_YT}, v{VE+3}")
    a(f"s_lshl_b32 {sr(S_T0)}, {sr(S_DB)}, 10")
    a(f"s_add_u32 {sr(S_T0)}, {sr(S_T0)}, {WS_FLAGY}")
    a(f"v_and_b32 v{VF}, 31, v{V_L}")
    a(f"v_lshlrev_b32 v{VF}, 5, v{VF}")
    a(f"v_add_u32 v{VF}, {sr(S_T0)}, v{VF}")
    a(f"v_lshlrev_b32 v28, 1, v{VE+1}")
    a(f"v_lshlrev_b32 v29, 2, v{VE}")
    a(f"v_add_u32 v29, {WS_G}, v29")
    for k in range(64):
        a(f"v_mov_b32 v{ACC+k}, 0")

    tags = {}
    fill = Fill()
    for t in range(4):
        fill.add([lambda t=t: a(f"buffer_load_dwordx2 {vr(EU+2*t,2)}, v{VE+2}, {sr(SRD_U,4)}, 0 offen offset:{32*t}")], gap=1)
        fill.add([lambda t=t: a(f"global_load_dwordx2 {vr(ED+2*t,2)}, v28, {sr(P_DSKIP,2)} offset:{32*t}")], gap=1)
        fill.add([lambda t=t: a(f"global_load_dwordx2 {vr(EB+2*t,2)}, v28, {sr(P_B2,2)} offset:{32*t}")], gap=1)
    fill.add([lambda: tags.__setitem__("g", a(f"buffer_load_dword v{EG}, v29, {sr(SRD_WS,4)}, 0 offen sc1"))])

    def y_ops():
        ops = []
        for t in range(4):
            for h in range(2):
                ops.append(lambda t=t, h=h: a(f"s_mov_b32 {sr(S_T2)}, {t*8*8192 + h*8192}"))
                ops.append(lambda t=t, h=h: tags.__setitem__("y", a(
                    f"buffer_load_dword v{EY+2*t+h}, v{VE+3}, {sr(SRD_WS,4)}, {sr(S_T2)} offen sc1")))
        return ops

    def z_ops():
        X0 = 250
        ops = [lambda: a.wait_vm(tags["y"]),
               lambda: a(f"v_sub_f32 v{OM}, 1.0, v{EG}"),
               lambda: a(f"v_cvt_pk_bf16_f32 v{OM}, v{OM}, v{OM}"),
               lambda: a(f"v_and_b32 v{OM}, 0xffff0000, v{OM}")]
        for t in range(4):
            for h in range(2):
                u2, y2, d2, b2 = EU + 2 * t + h, EY + 2 * t + h, ED + 2 * t + h, EB + 2 * t + h
                for e in range(2):
                    k = 4 * t + 2 * h + e
                    for dst, src in ((X0, u2), (X0 + 1, y2), (X0 + 2, d2), (X0 + 3, b2)):
                        if e == 0:
                            ops.append(lambda dst=dst, src=src: a(f"v_lshlrev_b32 v{dst}, 16, v{src}"))
                        else:
                            ops.append(lambda dst=dst, src=src: a(f"v_and_b32 v{dst}, 0xffff0000, v{src}"))
                    ops.append(lambda: a(f"v_fma_f32 v{X0}, v{X0}, v{X0+2}, v{X0+1}"))
                    ops.append(lambda: a(f"v_mul_f32 v{X0+3}, v{OM}, v{X0+3}"))
                    ops.append(lambda k=k: a(f"v_fma_f32 v{ZR+k}, v{EG}, v{X0}, v{X0+3}"))
        return ops

    for p in range(4):
        acc = lambda t: ACC + (p * 4 + t) * 4
        if o.get("fine"):
            self.stamp(f"p{p}")
        if p == 1:
            a.wait_vm(self.tag_pubY)
            a("s_barrier")
            a(f"s_lshl_b32 {sr(S_T0)}, {sr(S_WG)}, 5")
            a(f"s_add_u32 {sr(S_T0)}, {sr(S_T0)}, {WS_FLAGY}")
            self.flag_store(S_T0, 26)
        if p == 2:
            fill.q.append(lambda: tags.__setitem__("fy", self.flag_load(VFV, VF)))
        if p == 3:
            self.flag_check("Y", VFV, VF, tags["fy"])
            a("s_waitcnt lgkmcnt(0)")
            a("s_barrier")
            a(f"s_mul_i32 {sr(S_T0)}, {sr(S_WAVE)}, {3*4096}")
            a(f"s_add_u32 {sr(S_T0)}, {sr(S_T0)}, {L_RED2}")
            a(f"v_lshl_add_u32 v{VRW}, v{V_L}, 4, {sr(S_T0)}")
            PR = HB
            fill.add(y_ops())
            for q in range(3):
                for t in range(4):
                    fill.q.append(lambda q=q, t=t: a(f"ds_read_b128 {vr(PR+16*q+4*t,4)}, v{VRW} offset:{4096*q + 1024*t}"))
        for st in range(14):
            if o.get("fine") and st in (0, 1, 7):
                self.stamp(f"p{p}s{st}")
            a.wait_vm(ht[(p, st)])
            hb = HB + (p & 1) * 56 + 4 * st
            for t in range(4):
                a(f"{MF} {vr(acc(t),4)}, {ar((st*4+t)*4,4)}, {vr(hb,4)}, {vr(acc(t),4)}")
                if t == 3 and p + 2 < 4:
                    for op in h_load(p + 2, st):
                        op()
                else:
                    fill.step()
        if p < 3:
            a(f"s_add_u32 {sr(S_T0)}, {sr(S_WAVE)}, {p+1}")
            a(f"s_and_b32 {sr(S_T0)}, {sr(S_T0)}, 3")
            a(f"s_mul_i32 {sr(S_T0)}, {sr(S_T0)}, {3*4096}")
            a(f"s_add_u32 {sr(S_T0)}, {sr(S_T0)}, {L_RED2 + p*4096}")
            a(f"v_lshl_add_u32 v{VRW}, v{V_L}, 4, {sr(S_T0)}")
            for t in range(4):
                a(f"ds_write_b128 v{VRW}, {vr(acc(t),4)} offset:{1024*t}")
    fill.drain()
    self.stamp("gemm2")
    for op in z_ops():
        op()
    own = ACC + 48
    PR = HB
    a("s_waitcnt lgkmcnt(0)")
    for q in range(3):
        for k in range(0, 16, 2):
            a(f"v_pk_add_f32 {vr(own+k,2)}, {vr(own+k,2)}, {vr(PR+16*q+k,2)}")
    res = 96
    for k in range(16):
        a(f"v_fma_f32 v{own+k}, v{OM}, v{own+k}, v{ZR+k}")
    for k in range(8):
        a(f"v_cvt_pk_bf16_f32 v{res+k}, v{own+2*k}, v{own+2*k+1}")
    a(f"v_and_b32 v{VF}, 1, v{V_G}")
    a(f"v_lshlrev_b32 v{VF}, 5, v{VF}")
    a(f"v_lshrrev_b32 v{VF+1}, 1, v{V_G}")
    a(f"v_lshl_add_u32 v{VF}, v{VF+1}, 4, v{VF}")
    a(f"v_lshl_add_u32 v{VF}, v{VE}, 10, v{VF}")
    a(f"s_lshl_b32 {sr(S_T0)}, {sr(S_DB)}, 7")
    for P in range(2):
        r0 = res + 4 * P
        a(f"v_permlane16_swap_b32 v{r0}, v{r0+2}")
        a(f"v_permlane16_swap_b32 v{r0+1}, v{r0+3}")
    for P in range(2):
        r0 = res + 4 * P
        a(f"buffer_store_dwordx4 {vr(r0,4)}, v{VF}, {sr(SRD_OUT,4)}, {sr(S_T0)} offen offset:{64*P}")
```

```python
import sys, struct, math, json, argparse
from asmlib import Asm, vr, ar, sr

KNAME = "gated_mix__ssm_conv_s4__mixer_channel_mlp__prompt_kernel"
LOG2E = math.log2(math.e)
SPIN_MAX = 400000

WS_EPOCH = 0
WS_FLAGA = 4096
WS_FLAGY = 16384
WS_FLAGW = 24576
WS_G = 32768
WS_UT = 65536
WS_YT = WS_UT + (2 << 20)
WS_H = WS_YT + (2 << 20)
WS_W2T = WS_H + 128 * 8 * 7 * 1024
WS_END = WS_W2T + 1792 * 1024
WS_DUMP = WS_END + (1 << 20)

LDS_TOTAL = 163840
L_GATEW = 131072
L_ONES = L_GATEW + 1024 + 64
L_ZEROS = L_ONES + 1024 + 64
L_UTS = L_ZEROS + 1024 + 128
L_CS = L_UTS + 8192
L_B1 = L_CS + 512
L_W2U = L_B1 + 512
TROW = 544
L_HI = 0
L_LO = 2 * 32 * TROW
L_TAB = 4 * 32 * TROW
TAB_ZERO = 1000
KCS = 4160
L_KC = L_TAB + 4096
L_UB = L_KC + 8 * KCS
UBS = 4608
L_RED = L_UB + 2 * UBS
L_RED2 = 0
assert L_RED + 4 * 8192 <= LDS_TOTAL - 64 and L_W2U + 8192 <= LDS_TOTAL - 64

S_WG, S_T0, S_WAVE, S_RB, S_CB, S_T3, S_TB, S_DB, S_T1, S_T2 = 2, 3, 4, 5, 6, 7, 8, 9, 10, 11
SRD_U, SRD_W1, SRD_W2, SRD_WS, SRD_OUT = 12, 16, 20, 24, 28
P_U, P_ARE, P_AIM, P_BRE, P_BIM, P_CRE, P_CIM, P_LOGDT = 32, 34, 36, 38, 40, 42, 44, 46
P_DSKIP, P_W1, P_B1, P_W2, P_B2, P_GATE, P_OUT, P_DBG, P_WS = 48, 52, 54, 56, 58, 60, 62, 64, 66
S_X0, S_X1, S_WOFF, S_M0, S_NONCE, S_IDX = 68, 69, 70, 71, 72, 73
S_EX, S_C2, S_M1, S_M2, S_M3, S_PC = 74, 76, 78, 80, 82, 84
S_T4, S_T5, S_T6, S_T7 = 86, 87, 88, 89
S_TS = 90
S_SPIN, S_ROT, S_XS, S_WS2, S_MW, S_W2B = 92, 93, 94, 95, 96, 97
S_HB = 32
S_L0 = 50
S_L1 = 51
S_SIG = [36, 37, 38, 39, 40, 41, 42, 43, 44, 45, 46, 47, 0, 1]

V_L, V_I, V_G = 1, 2, 3
V_TID = 0
BF16_ONE2 = 0x3F803F80
MF = "v_mfma_f32_16x16x32_bf16"


def f2u(x):
    return struct.unpack("<I", struct.pack("<f", x))[0]


def cmul(a, dst, p, w, tmp):
    a(f"v_pk_mul_f32 {vr(tmp,2)}, {vr(p,2)}, {vr(w,2)} op_sel:[0,0] op_sel_hi:[1,0]")
    a(f"v_pk_fma_f32 {vr(dst,2)}, {vr(p,2)}, {vr(w,2)}, {vr(tmp,2)} op_sel:[1,1,0] op_sel_hi:[0,1,1] neg_lo:[0,1,0]")


class Fill:
    def __init__(self):
        self.q = []

    def add(self, ops, gap=0):
        for op in ops:
            self.q.append(op)
            self.q += [None] * gap

    def step(self, n=1):
        for _ in range(n):
            if self.q:
                op = self.q.pop(0)
                if op is not None:
                    op()

    def drain(self):
        while self.q:
            self.step()

    def pending(self):
        return [x for x in self.q if x is not None]


class Paced:
    def __init__(self, asm, fill, period):
        self.asm, self.fill, self.period, self.n, self.busy = asm, fill, period, 0, False

    def __call__(self, text, count=True):
        tag = self.asm(text, count)
        if self.busy:
            return tag
        self.n += 1
        if self.n >= self.period and not text.startswith(("s_waitcnt", "s_barrier", "s_mov_b64 exec", "s_add_u32 m0", "v_cmp", "s_cmp")):
            self.n = 0
            self.busy = True
            self.fill.step()
            self.busy = False
        return tag

    def __getattr__(self, name):
        return getattr(self.asm, name)


class Gen:
    def __init__(self, opts):
        self.o = opts
        self.a = Asm()
        self.stamp_n = 0
        self.uid = 0

    def stamp(self, name):
        if not self.o.get("stamps"):
            return
        a = self.a
        n = self.stamp_n
        self.stamp_n += 1
        self.o.setdefault("stamp_names", []).append(name)
        pair = (98, 100)[n & 1]
        if n >= 2:
            a(f"v_writelane_b32 v255, s{pair}, {n-2}")
        a(f"{'s_memrealtime' if self.o.get('rt') else 's_memtime'} s[{pair}:{pair+1}]")

    def stamp_flush(self):
        if not self.o.get("stamps"):
            return
        a = self.a
        a("s_waitcnt lgkmcnt(0)")
        n = self.stamp_n
        for k in (n - 2, n - 1):
            a(f"v_writelane_b32 v255, s{(98, 100)[k & 1]}, {k}")
        a(f"s_lshl_b32 {sr(S_T0)}, {sr(S_WG)}, 2")
        a(f"s_add_u32 {sr(S_T0)}, {sr(S_T0)}, {sr(S_WAVE)}")
        a(f"s_lshl_b32 {sr(S_T0)}, {sr(S_T0)}, 8")
        a(f"s_add_u32 {sr(S_T0)}, {sr(S_T0)}, {WS_END}")
        a(f"v_lshlrev_b32 v254, 2, v{V_L}")
        a(f"buffer_store_dword v255, v254, {sr(SRD_WS,4)}, {sr(S_T0)} offen")

    def flag_store(self, off_sreg, t0):
        a = self.a
        a(f"v_mov_b32 v{t0}, {sr(off_sreg)}")
        a(f"v_mov_b32 v{t0+1}, {sr(S_NONCE)}")
        a(f"s_mov_b64 {sr(S_EX,2)}, exec")
        a("s_mov_b64 exec, 1")
        tag = a(f"buffer_store_dword v{t0+1}, v{t0}, {sr(SRD_WS,4)}, 0 offen sc1")
        a(f"s_mov_b64 exec, {sr(S_EX,2)}")
        return tag

    def flag_load(self, vdst, vaddr):
        return self.a(f"buffer_load_dword v{vdst}, v{vaddr}, {sr(SRD_WS,4)}, 0 offen sc1")

    def flag_check(self, name, vdst, vaddr, tag, wave0=False):
        a = self.a
        if wave0:
            a(f"s_cmp_lg_u32 {sr(S_WAVE)}, 0")
            a(f"s_cbranch_scc1 L_ok_{name}")
        a.wait_vm(tag)
        a(f"v_cmp_ne_u32 vcc, {sr(S_NONCE)}, v{vdst}")
        a("s_nop 0")
        a("s_cmp_eq_u64 vcc, 0")
        a(f"s_cbranch_scc1 L_ok_{name}")
        a(f"s_mov_b32 {sr(S_SPIN)}, {SPIN_MAX}")
        a.label(f"L_poll_{name}")
        a("s_sleep 2")
        a(f"buffer_load_dword v{vdst}, v{vaddr}, {sr(SRD_WS,4)}, 0 offen sc1", count=False)
        a("s_waitcnt vmcnt(0)")
        a(f"v_cmp_ne_u32 vcc, {sr(S_NONCE)}, v{vdst}")
        a(f"s_sub_u32 {sr(S_SPIN)}, {sr(S_SPIN)}, 1")
        a(f"s_cmp_eq_u32 {sr(S_SPIN)}, 0")
        a(f"s_cbranch_scc1 L_ok_{name}")
        a("s_cmp_lg_u64 vcc, 0")
        a(f"s_cbranch_scc1 L_poll_{name}")
        a.label(f"L_ok_{name}")

    def prologue(self):
        a = self.a
        a(f"s_cmp_ge_u32 {sr(S_WG)}, 256")
        a("s_cbranch_scc1 L_end")
        if self.o.get("clk"):
            a("s_memtime s[98:99]")
            a("s_memrealtime s[100:101]")
        a(f"s_load_dwordx16 {sr(32,16)}, s[0:1], 0")
        a(f"s_load_dwordx2 {sr(P_DSKIP,2)}, s[0:1], 64")
        a(f"s_load_dwordx4 {sr(52,4)}, s[0:1], 80")
        a(f"s_load_dwordx4 {sr(56,4)}, s[0:1], 96")
        a(f"s_load_dwordx4 {sr(60,4)}, s[0:1], 112")
        a(f"s_load_dwordx4 {sr(64,4)}, s[0:1], 128")
        if self.o.get("stamps"):
            a("v_mov_b32 v255, 0")
            self.stamp("entry")
        a(f"v_lshrrev_b32 v4, 6, v{V_TID}")
        a(f"v_and_b32 v{V_L}, 63, v{V_TID}")
        a(f"v_readfirstlane_b32 {sr(S_WAVE)}, v4")
        a(f"v_and_b32 v{V_I}, 15, v{V_L}")
        a(f"v_lshrrev_b32 v{V_G}, 4, v{V_L}")
        a(f"s_and_b32 {sr(S_T0)}, {sr(S_WG)}, 7")
        a(f"s_lshr_b32 {sr(S_IDX)}, {sr(S_WG)}, 3")
        a(f"s_and_b32 {sr(S_T1)}, {sr(S_IDX)}, 3")
        a(f"s_lshr_b32 {sr(S_DB)}, {sr(S_IDX)}, 2")
        a(f"s_lshr_b32 {sr(S_T2)}, {sr(S_T0)}, 1")
        a(f"s_lshl_b32 {sr(S_T2)}, {sr(S_T2)}, 2")
        a(f"s_add_u32 {sr(S_RB)}, {sr(S_T2)}, {sr(S_T1)}")
        a(f"s_and_b32 {sr(S_T2)}, {sr(S_T0)}, 1")
        a(f"s_lshl_b32 {sr(S_T2)}, {sr(S_T2)}, 3")
        a(f"s_add_u32 {sr(S_CB)}, {sr(S_T2)}, {sr(S_DB)}")
        a(f"s_lshl_b32 {sr(S_T2)}, {sr(S_T0)}, 2")
        a(f"s_add_u32 {sr(S_TB)}, {sr(S_T2)}, {sr(S_T1)}")

    def build_srds(self):
        a = self.a
        wsz = WS_DUMP + (16 << 20) if self.o.get("dump") else WS_END + (256 * 4 * 256 if self.o.get("stamps") else 0)
        for srd, p, size in ((SRD_U, P_U, 2048 * 1024), (SRD_W1, P_W1, 512 * 3584), (SRD_W2, P_W2, 1792 * 1024),
                             (SRD_WS, P_WS, wsz), (SRD_OUT, P_OUT, 2048 * 1024)):
            a(f"s_mov_b32 {sr(srd)}, {sr(p)}")
            a(f"s_and_b32 {sr(srd+1)}, {sr(p+1)}, 0xffff")
            a(f"s_mov_b32 {sr(srd+2)}, {size}")
            a(f"s_mov_b32 {sr(srd+3)}, 0x20000")

    def k_tables(self, KP, R, VTA, fill=None, period=12):
        cnt = [0]

        def a(text):
            self.a(text)
            cnt[0] += 1
            if fill is not None and cnt[0] % period == 0:
                fill.step()
        DT, A2, BR = R, R + 1, R + 2
        W, W1, W2, W4, W8, VV = R + 4, R + 6, R + 8, R + 10, R + 12, R + 14
        P, Q, TMP, PK, QQ, QB = R + 16, R + 18, R + 20, R + 22, R + 26, R + 28
        for k in range(7):
            a(f"v_lshlrev_b32 v{KP+k}, 16, v{KP+k}")
        ARE, AIM, BRE, BIM, CRE, CIM, LDT = (KP + k for k in range(7))
        a(f"v_mul_f32 v{DT}, {f2u(LOG2E):#x}, v{LDT}")
        a(f"v_exp_f32 v{DT}, v{DT}")
        a(f"v_cvt_pk_bf16_f32 v{DT}, v{DT}, v{DT}")
        a(f"v_and_b32 v{DT}, 0xffff0000, v{DT}")
        a(f"v_mul_f32 v{A2}, v{DT}, v{ARE}")
        a(f"v_mul_f32 v{BR}, v{DT}, v{AIM}")
        a(f"v_mul_f32 v{BRE}, v{DT}, v{BRE}")
        a(f"v_mul_f32 v{BIM}, v{DT}, v{BIM}")
        a(f"v_mul_f32 v{A2}, {f2u(LOG2E):#x}, v{A2}")
        a(f"v_mul_f32 v{BR}, {f2u(1.0/(2*math.pi)):#x}, v{BR}")
        a(f"v_mul_f32 v{W}, v{CRE}, v{BRE}")
        a(f"v_mul_f32 v{W+1}, v{CRE}, v{BIM}")
        a(f"v_fma_f32 v{W}, -v{CIM}, v{BIM}, v{W}")
        a(f"v_fma_f32 v{W+1}, v{CIM}, v{BRE}, v{W+1}")
        for n, (dst, t) in enumerate(((W1, 1.0), (W8, 8.0), (VV, 256.0))):
            e, f = P + 2 * n, P + 2 * n + 1
            a(f"v_mul_f32 v{e}, {f2u(t):#x}, v{A2}")
            a(f"v_mul_f32 v{f}, {f2u(t):#x}, v{BR}")
        for n in range(3):
            a(f"v_exp_f32 v{P+2*n}, v{P+2*n}")
            a(f"v_fract_f32 v{P+2*n+1}, v{P+2*n+1}")
        for n, dst in enumerate((W1, W8, VV)):
            a(f"v_cos_f32 v{dst}, v{P+2*n+1}")
            a(f"v_sin_f32 v{dst+1}, v{P+2*n+1}")
        for n, dst in enumerate((W1, W8, VV)):
            a(f"v_mul_f32 v{dst}, v{P+2*n}, v{dst}")
            a(f"v_mul_f32 v{dst+1}, v{P+2*n}, v{dst+1}")
        cmul(a, W2, W1, W1, TMP)
        cmul(a, W4, W2, W2, TMP)
        n = [0]

        def put(src, slot, hi):
            pk = PK + (n[0] & 3)
            n[0] += 1
            a(f"v_cvt_pk_bf16_f32 v{pk}, v{src}, {'-' if hi else ''}v{src+1}")
            a(f"ds_write_b32 v{VTA}, v{pk} offset:{(L_HI + slot*TROW) if slot < 21 else (L_LO + (slot-21)*TROW)}")

        put(W, 0, True)
        cur, oth = W, P
        for i in range(1, 8):
            cmul(a, oth, cur, W1, TMP); put(oth, i, True)
            cur, oth = oth, (Q if oth == P else P)
        cmul(a, QQ, W, VV, TMP); put(QQ, 8, True)
        cmul(a, P, QQ, W2, TMP); put(P, 9, True)
        cmul(a, Q, P, W2, TMP); put(Q, 10, True)
        cmul(a, P, Q, W2, TMP); put(P, 11, True)
        cmul(a, QB, QQ, VV, TMP); put(QB, 12, True)
        cmul(a, P, QB, W4, TMP); put(P, 13, True)
        cmul(a, QQ, QB, VV, TMP); put(QQ, 14, True)
        cmul(a, P, QQ, W4, TMP); put(P, 15, True)
        cur, oth = QQ, QB
        for row in range(16, 21):
            cmul(a, oth, cur, VV, TMP); put(oth, row, True)
            cur, oth = oth, cur
        a(f"v_mov_b32 v{P}, 1.0")
        a(f"v_mov_b32 v{P+1}, 0")
        put(P, 21, False)
        put(W8, 22, False)
        cur, oth = W8, P
        for j in range(2, 32):
            cmul(a, oth, cur, W8, TMP); put(oth, 21 + j, False)
            cur, oth = oth, (Q if oth == P else P)

    def phase_a(self):
        a, o = self.a, self.o
        VA, VAC, VGT, VXR = 4, 11, 13, 14
        KP = 16
        VNON = 24
        VFW, VFA, VW2, VB1O, VZERO = 26, 27, 28, 29, 30
        ACC, ACCS, ACCG, ACCC = 32, 88, 96, 104
        AF, AC, GF, ONEB, XF = 112, 140, 148, 152, 156
        VXD, VWD, VUS = 172, 176, 178
        VB1, VGC = 182, 183
        VGO, VPA, VPD = 250, 251, 252
        T = 184
        acc = lambda t, tt: ACC + (t * 2 + tt) * 4
        X = lambda s, tt: XF + ((s & 1) * 2 + tt) * 4

        for q in range(4):
            a(f"v_or_b32 v{T}, {4*(q&1)}, v{V_G}")
            a(f"v_and_b32 v{T+1}, 7, v{V_L}")
            a(f"v_xor_b32 v{T+1}, v{T+1}, v{T}")
            a(f"v_lshrrev_b32 v{T+2}, 3, v{V_L}")
            a(f"v_lshlrev_b32 v{T+2}, 10, v{T+2}")
            a(f"v_lshl_add_u32 v{VXD+q}, v{T+1}, 4, v{T+2}")
            if q:
                a(f"v_add_u32 v{VXD+q}, {q*(8192-1024)}, v{VXD+q}")
        a(f"v_lshrrev_b32 v{T}, 2, v{V_L}")
        a(f"v_lshlrev_b32 v{T}, 10, v{T}")
        a(f"v_and_b32 v{T+1}, 3, v{V_L}")
        a(f"v_lshl_add_u32 v{VUS}, v{T+1}, 4, v{T}")
        a(f"s_lshl_b32 {sr(S_T0)}, {sr(S_WAVE)}, 12")
        for kk in range(2):
            a(f"v_or_b32 v{T}, {4*kk}, v{V_G}")
            a(f"v_lshrrev_b32 v{T+1}, 1, v{V_I}")
            a(f"v_xor_b32 v{T}, v{T}, v{T+1}")
            a(f"v_lshlrev_b32 v{T+1}, 7, v{V_I}")
            a(f"v_lshl_add_u32 v{T}, v{T}, 4, v{T+1}")
            a(f"v_add_u32 v{VXR+kk}, {sr(S_T0)}, v{T}")
        a(f"s_and_b32 {sr(S_T0)}, {sr(S_WAVE)}, 1")
        a(f"s_lshl_b32 {sr(S_T0)}, {sr(S_T0)}, 2")
        a(f"v_or_b32 v{T}, {sr(S_T0)}, v{V_G}")
        a(f"v_lshrrev_b32 v{T+1}, 1, v{V_I}")
        a(f"v_xor_b32 v{T+1}, v{T+1}, v{T}")
        a(f"v_min_u32 v{T+1}, 6, v{T+1}")
        a(f"v_lshlrev_b32 v{T+1}, 5, v{T+1}")
        a(f"v_and_b32 v{T+2}, 1, v{V_I}")
        a(f"v_lshl_add_u32 v{T+1}, v{T+2}, 4, v{T+1}")
        a(f"v_mul_u32_u24 v{VWD}, 3584, v{V_G}")
        a(f"v_add_u32 v{VWD}, v{VWD}, v{T+1}")
        a(f"v_add_u32 v{VWD+1}, {4*3584-1024}, v{VWD}")
        VKO = 253
        VKO1 = 31
        a(f"s_lshr_b32 {sr(S_T0)}, {sr(S_WAVE)}, 1")
        a(f"s_lshl_b32 {sr(S_T1)}, {sr(S_WG)}, 1")
        a(f"s_add_u32 {sr(S_T1)}, {sr(S_T1)}, {sr(S_T0)}")
        a(f"s_and_b32 {sr(S_T0)}, {sr(S_WAVE)}, 1")
        a(f"s_lshl_b32 {sr(S_T0)}, {sr(S_T0)}, 6")
        a(f"s_lshl_b32 {sr(S_T2)}, {sr(S_T1)}, 7")
        a(f"s_add_u32 {sr(S_T2)}, {sr(S_T2)}, {sr(S_T0)}")
        a(f"v_add_lshl_u32 v{VKO}, v{V_L}, {sr(S_T2)}, 1")
        a(f"s_lshl_b32 {sr(S_T1)}, {sr(S_T1)}, 1")
        a(f"v_mov_b32 v{VKO1}, {sr(S_T1)}")
        a(f"v_and_b32 v{T+3}, 127, v{V_TID}")
        a(f"v_min_u32 v{T+3}, 111, v{T+3}")
        a(f"s_mul_i32 {sr(S_T0)}, {sr(S_CB)}, 112")
        a(f"v_add_lshl_u32 v{VB1O}, v{T+3}, {sr(S_T0)}, 1")
        a(f"s_lshl_b32 {sr(S_X0)}, {sr(S_RB)}, 2")
        a(f"s_add_u32 {sr(S_X0)}, {sr(S_X0)}, {sr(S_WAVE)}")
        a(f"s_lshl_b32 {sr(S_X0)}, {sr(S_X0)}, 15")
        a(f"s_mul_i32 {sr(S_WOFF)}, {sr(S_WAVE)}, {8*3584}")
        a(f"s_mul_i32 {sr(S_T0)}, {sr(S_CB)}, 224")
        a(f"s_add_u32 {sr(S_WOFF)}, {sr(S_WOFF)}, {sr(S_T0)}")
        a(f"s_lshl_b32 {sr(S_M0)}, {sr(S_WAVE)}, 12")
        a(f"s_lshl_b32 {sr(S_MW)}, {sr(S_WAVE)}, 11")
        a(f"s_add_u32 {sr(S_MW)}, {sr(S_MW)}, 0x10000")
        if o.get("rot", True):
            a(f"s_add_u32 {sr(S_ROT)}, {sr(S_RB)}, {sr(S_CB)}")
        else:
            a(f"s_mov_b32 {sr(S_ROT)}, 0")
        U, UD, UR = S_T4, S_T5, S_T6
        a(f"s_lshl_b32 {sr(U)}, {sr(S_WG)}, 2")
        a(f"s_add_u32 {sr(U)}, {sr(U)}, {sr(S_WAVE)}")
        a(f"s_min_u32 {sr(U)}, {sr(U)}, 895")
        a(f"s_mul_i32 {sr(UD)}, {sr(U)}, 9363")
        a(f"s_lshr_b32 {sr(UD)}, {sr(UD)}, 18")
        a(f"s_mul_i32 {sr(S_T0)}, {sr(UD)}, 28")
        a(f"s_sub_u32 {sr(UR)}, {sr(U)}, {sr(S_T0)}")
        a(f"s_lshr_b32 {sr(UR)}, {sr(UR)}, 1")
        a(f"s_cmp_ge_u32 {sr(UR)}, 7")
        a(f"s_cselect_b32 {sr(S_T0)}, 1, 0")
        a(f"s_mul_i32 {sr(S_T1)}, {sr(S_T0)}, 7")
        a(f"s_sub_u32 {sr(S_T1)}, {sr(UR)}, {sr(S_T1)}")
        a(f"s_mul_i32 {sr(S_T0)}, {sr(S_T0)}, 224")
        a(f"s_lshl_b32 {sr(S_T2)}, {sr(S_T1)}, 5")
        a(f"s_cmp_ge_u32 {sr(S_T1)}, 3")
        a(f"s_cselect_b32 {sr(S_T3)}, 16, 0")
        a(f"s_add_u32 {sr(S_T2)}, {sr(S_T2)}, {sr(S_T3)}")
        a(f"s_add_u32 {sr(S_T3)}, {sr(S_T2)}, 16")
        a(f"s_cmp_eq_u32 {sr(S_T1)}, 6")
        a(f"s_cselect_b32 {sr(S_T2)}, 96, {sr(S_T2)}")
        a(f"s_cselect_b32 {sr(S_T3)}, 208, {sr(S_T3)}")
        a(f"s_add_u32 {sr(S_T2)}, {sr(S_T2)}, {sr(S_T0)}")
        a(f"s_add_u32 {sr(S_T3)}, {sr(S_T3)}, {sr(S_T0)}")
        a(f"s_and_b32 {sr(S_T0)}, {sr(UD)}, 3")
        a(f"s_mul_i32 {sr(S_T0)}, {sr(S_T0)}, 448")
        a(f"s_add_u32 {sr(S_T2)}, {sr(S_T2)}, {sr(S_T0)}")
        a(f"s_add_u32 {sr(S_T3)}, {sr(S_T3)}, {sr(S_T0)}")
        a(f"s_lshl_b32 {sr(S_T2)}, {sr(S_T2)}, 10")
        a(f"s_lshl_b32 {sr(S_T3)}, {sr(S_T3)}, 10")
        a(f"s_lshr_b32 {sr(S_T0)}, {sr(UD)}, 2")
        a(f"s_lshl_b32 {sr(S_T0)}, {sr(S_T0)}, 7")
        a(f"s_and_b32 {sr(S_T1)}, {sr(U)}, 1")
        a(f"s_lshl_b32 {sr(S_T1)}, {sr(S_T1)}, 6")
        a(f"s_add_u32 {sr(S_T0)}, {sr(S_T0)}, {sr(S_T1)}")
        a(f"s_add_u32 {sr(S_L0)}, {sr(S_T2)}, {sr(S_T0)}")
        a(f"s_add_u32 {sr(S_L1)}, {sr(S_T3)}, {sr(S_T0)}")
        a(f"s_sub_u32 {sr(S_L1)}, {sr(S_L1)}, 1024")
        a(f"s_lshl_b32 {sr(S_T7)}, {sr(U)}, 11")
        a(f"s_add_u32 {sr(S_T7)}, {sr(S_T7)}, {WS_W2T}")
        a(f"s_lshl_b32 {sr(S_T0)}, {sr(S_DB)}, 2")
        a(f"s_add_u32 {sr(S_T0)}, {sr(S_T0)}, {sr(S_WAVE)}")
        a(f"s_mul_i32 {sr(S_W2B)}, {sr(S_T0)}, {56*1024}")
        a(f"s_add_u32 {sr(S_W2B)}, {sr(S_W2B)}, {WS_W2T}")
        a(f"s_mul_i32 {sr(S_T0)}, {sr(S_T0)}, {7*32}")
        a(f"s_add_u32 {sr(S_T0)}, {sr(S_T0)}, {WS_FLAGW}")
        a(f"v_min_u32 v{VFA}, 6, v{V_L}")
        a(f"v_lshl_add_u32 v{VFA}, v{VFA}, 5, {sr(S_T0)}")
        a(f"v_lshlrev_b32 v{VW2}, 4, v{V_L}")
        a(f"s_getpc_b64 {sr(S_PC,2)}")
        a.label("L_pc")
        a(f"s_lshl_b32 {sr(S_T0)}, {sr(S_IDX)}, 2")
        a(f"s_add_u32 {sr(S_T0)}, {sr(S_T0)}, {sr(S_WAVE)}")
        a(f"s_mul_i32 {sr(S_T0)}, {sr(S_T0)}, PF_LINES")
        a(f"v_min_u32 v{VPA}, PF_LINES-1, v{V_L}")
        a(f"v_add_lshl_u32 v{VPA}, v{VPA}, {sr(S_T0)}, 6")
        a(f"v_min_u32 v{VPA}, L_end-L_pc, v{VPA}")
        a(f"v_lshlrev_b32 v{VGO}, 4, v{V_L}")
        a("s_waitcnt lgkmcnt(0)")
        self.build_srds()
        self.stamp("start")

        xtag, wtag = {}, {}

        def x_ops(S):
            halves = []
            for h in range(2):
                ops = []
                if h == 0:
                    ops.append(lambda: a(f"s_add_u32 {sr(S_XS)}, {sr(S_ROT)}, {S}"))
                    ops.append(lambda: a(f"s_and_b32 {sr(S_XS)}, {sr(S_XS)}, 7"))
                    ops.append(lambda: a(f"s_lshl_b32 {sr(S_XS)}, {sr(S_XS)}, 7"))
                    ops.append(lambda: a(f"s_add_u32 {sr(S_XS)}, {sr(S_XS)}, {sr(S_X0)}"))
                ops.append(lambda: a(f"s_add_u32 m0, {sr(S_M0)}, {(S % 4) * 16384}"))
                for q in (2 * h, 2 * h + 1):
                    def ld(q=q):
                        xtag[S] = a(f"buffer_load_dwordx4 v{VXD+q}, {sr(SRD_U,4)}, {sr(S_XS)} offen offset:{q*1024} lds")
                    ops.append(ld)
                halves.append(ops)
            return halves

        def w_ops(s):
            ops = []
            if (s & 1) == 0:
                ops.append(lambda: a(f"s_add_u32 {sr(S_WS2)}, {sr(S_ROT)}, {s//2}"))
                ops.append(lambda: a(f"s_and_b32 {sr(S_WS2)}, {sr(S_WS2)}, 7"))
                ops.append(lambda: a(f"s_mul_i32 {sr(S_WS2)}, {sr(S_WS2)}, {64*3584}"))
                ops.append(lambda: a(f"s_add_u32 {sr(S_WS2)}, {sr(S_WS2)}, {sr(S_WOFF)}"))
            else:
                ops.append(lambda: a(f"s_add_u32 {sr(S_WS2)}, {sr(S_WS2)}, {32*3584}"))
            ops.append(lambda: a(f"s_add_u32 m0, {sr(S_MW)}, {(s % 8) * 8192}"))
            for q in range(2):
                def ld(q=q):
                    wtag[s] = a(f"buffer_load_dwordx4 v{VWD+q}, {sr(SRD_W1,4)}, {sr(S_WS2)} offen offset:{q*1024} lds")
                ops.append(ld)
            return [ops]

        def flat(groups):
            return [op for g in groups for op in g]

        def paced(groups):
            out = []
            for g in groups:
                pre, l0, l1 = g[:-2], g[-2], g[-1]
                blk = pre + [l0]
                blk += [None] * (9 - len(blk)) + [l1]
                out += blk
            return out

        def run(groups):
            for op in flat(groups):
                op()

        a(f"v_mov_b32 v{VZERO}, 0")
        a(f"s_or_b32 {sr(S_T0)}, {sr(S_WG)}, {sr(S_WAVE)}")
        a(f"s_cmp_lg_u32 {sr(S_T0)}, 0")
        a("s_cbranch_scc1 L_noepoch0")
        a(f"buffer_load_dword v23, v{VZERO}, {sr(SRD_WS,4)}, 0 offen sc1", count=False)
        a.label("L_noepoch0")
        if "touch" in o["exp"]:
            a(f"v_lshlrev_b32 v{T+14}, 18, v{V_L}")
            a(f"buffer_load_dword v{T+15}, v{T+14}, {sr(SRD_WS,4)}, 0 offen")
            a(f"v_lshlrev_b32 v{T+14}, 15, v{V_L}")
            a(f"buffer_load_dword v{T+15}, v{T+14}, {sr(SRD_OUT,4)}, 0 offen")
            a(f"v_mov_b32 v{T+14}, 0")
            a(f"global_load_dword v{T+15}, v{T+14}, {sr(P_DSKIP,2)}")
            a(f"global_load_dword v{T+15}, v{T+14}, {sr(P_B2,2)}")
        run(x_ops(0)); run(w_ops(0))
        a(f"s_mov_b32 m0, {L_GATEW}")
        tag_gate = a(f"global_load_lds_dwordx4 v{VGO}, {sr(P_GATE,2)}")
        run(w_ops(1))
        self.stamp("issued")
        ptags = {}
        pro = Fill()

        def w2u_dma():
            a(f"s_lshl_b32 {sr(S_T3)}, {sr(S_WAVE)}, 11")
            a(f"s_add_u32 m0, {sr(S_T3)}, {L_W2U}")
            a(f"buffer_load_dwordx4 v{VUS}, {sr(SRD_W2,4)}, {sr(S_L0)} offen lds")
        pro.q = [w2u_dma,
                 lambda: ptags.__setitem__("w2u", a(f"buffer_load_dwordx4 v{VUS}, {sr(SRD_W2,4)}, {sr(S_L1)} offen offset:1024 lds"))]

        def merged(groups):
            out = []
            for g in groups:
                out.append(lambda g=g: [op() for op in g[:-1]])
                out.append(g[-1])
            return out
        pro.q += merged(x_ops(1)) + merged(w_ops(2)) + merged(w_ops(3)) + merged(w_ops(4))
        pro.q.append(lambda: a(f"global_load_dword v{VPD}, v{VPA}, {sr(S_PC,2)}"))
        a0 = a
        a = Paced(a0, pro, 13)
        for k in range(4):
            a(f"v_mov_b32 v{ONEB+k}, {BF16_ONE2:#x}")
            a(f"v_mov_b32 v{T+8+k}, 0")
        a(f"v_lshlrev_b32 v{T+2}, 4, v{V_L}")
        a(f"v_add_u32 v{T+12}, {L_GATEW}, v{T+2}")
        a(f"ds_write_b128 v{T+12}, {vr(ONEB,4)} offset:{L_ONES - L_GATEW}")
        a(f"ds_write_b128 v{T+12}, {vr(T+8,4)} offset:{L_ZEROS - L_GATEW}")
        a(f"v_lshrrev_b32 v{T}, 2, v{V_I}")
        a(f"v_and_b32 v{T+1}, 1, v{V_G}")
        a(f"v_lshl_or_b32 v{T+1}, v{T+1}, 2, v{T}")
        a(f"v_lshl_add_u32 v{T+2}, v{V_G}, 3, v{T}")
        a(f"v_lshlrev_b32 v{T+2}, 8, v{T+2}")
        a(f"v_and_b32 v{T+3}, 3, v{V_I}")
        a(f"v_lshl_add_u32 v{T+2}, v{T+3}, 3, v{T+2}")
        a(f"v_add_u32 v{T+2}, 0x10000, v{T+2}")
        for t in range(7):
            a(f"v_xor_b32 v{T+4}, {t}, v{T+1}")
            a(f"v_lshl_add_u32 v{VA+t}, v{T+4}, 5, v{T+2}")
        a0(f"s_lshl_b32 {sr(S_T0)}, {sr(S_WAVE)}, 1")
        for k in range(2):
            a0(f"v_xor_b32 v{T+4}, {sr(S_T0)}, v{T+1}")
            if k:
                a0(f"v_xor_b32 v{T+4}, 1, v{T+4}")
            a0(f"v_lshl_add_u32 v{VAC+k}, v{T+4}, 5, v{T+2}")
        a(f"v_mov_b32 v{VGT}, {L_ZEROS}")
        a(f"v_mov_b32 v{T+4}, {L_ONES}")
        a(f"v_mov_b32 v{T+5}, {L_GATEW}")
        a(f"v_cmp_eq_u32 vcc, 0, v{T+3}")
        a(f"v_cndmask_b32 v{VGT}, v{VGT}, v{T+4}, vcc")
        a(f"v_cmp_eq_u32 vcc, 1, v{T+3}")
        a(f"v_cndmask_b32 v{VGT}, v{VGT}, v{T+5}, vcc")
        a(f"v_lshl_add_u32 v{VGT}, v{V_G}, 4, v{VGT}")
        for r in range(ACC, ACCC + 8):
            a(f"v_mov_b32 v{r}, 0")
        VW2U = T + 6
        a(f"v_lshrrev_b32 v{T}, 2, v{V_I}")
        a(f"v_lshl_add_u32 v{T}, v{V_G}, 2, v{T}")
        a(f"v_lshlrev_b32 v{T}, 6, v{T}")
        a(f"v_and_b32 v{T+1}, 3, v{V_I}")
        a(f"v_lshl_add_u32 v{T}, v{T+1}, 3, v{T}")
        a = a0
        a(f"s_lshl_b32 {sr(S_T0)}, {sr(S_WAVE)}, 11")
        a(f"s_add_u32 {sr(S_T0)}, {sr(S_T0)}, {L_W2U}")
        a(f"v_add_u32 v{VW2U}, {sr(S_T0)}, v{T}")
        self.stamp("setup")

        pro.drain()
        tag_w2u = ptags["w2u"]
        W2R = T + 16

        rd_tag = {}

        def rd_A(s, t, hi):
            rd_tag[("A", t)] = a(f"ds_read_b64_tr_b16 {vr(AF+4*t+2*hi,2)}, v{VA+t} offset:{(s % 8) * 8192 + 1024 * hi}")

        def rd_C(s, k, hi):
            rd_tag[("C", k)] = a(f"ds_read_b64_tr_b16 {vr(AC+4*k+2*hi,2)}, v{VAC+k} offset:{(s % 8) * 8192 + 1024 * hi}")

        def rd_G(s):
            rd_tag["G"] = a(f"ds_read_b128 {vr(GF,4)}, v{VGC} offset:{64*(s&1)}")

        def g_addr(s):
            return [lambda: a(f"s_add_u32 {sr(S_T3)}, {sr(S_ROT)}, {s//2}"),
                    lambda: a(f"s_and_b32 {sr(S_T3)}, {sr(S_T3)}, 7"),
                    lambda: a(f"s_lshl_b32 {sr(S_T3)}, {sr(S_T3)}, 7"),
                    lambda: a(f"v_add_u32 v{VGC}, {sr(S_T3)}, v{VGT}")]

        def rd_X(s, tt):
            a(f"ds_read_b128 {vr(X(s,tt),4)}, v{VXR+(s&1)} offset:{((s // 2) % 4) * 16384 + 2048*tt}")

        def ready_tag(s):
            tg = wtag[s]
            if (s & 1) == 0 and xtag[s // 2][1] > tg[1]:
                tg = xtag[s // 2]
            if s == 0 and tag_gate[1] > tg[1]:
                tg = tag_gate
            return tg

        for op in g_addr(0):
            op()
        a.wait_vm(ready_tag(0))
        a("s_waitcnt lgkmcnt(0)")
        a("s_barrier")
        self.stamp("stage0")
        a(f"s_or_b32 {sr(S_T0)}, {sr(S_WG)}, {sr(S_WAVE)}")
        a(f"s_cmp_lg_u32 {sr(S_T0)}, 0")
        a("s_cbranch_scc1 L_noepoch")
        a(f"s_mov_b32 {sr(S_T1)}, 0x9e3779b1")
        a(f"v_mul_lo_u32 v{T+10}, v23, {sr(S_T1)}")
        a(f"v_add_u32 v{T+10}, 0x7f4a7c15, v{T+10}")
        a(f"v_mov_b32 v{T+11}, 1")
        a(f"buffer_store_dword v{T+10}, v{VZERO}, {sr(SRD_WS,4)}, 0 offen sc1", count=False)
        a(f"global_store_dwordx2 v{VZERO}, {vr(T+10,2)}, {sr(P_DBG,2)} sc1", count=False)
        a.label("L_noepoch")
        rd_X(0, 0); rd_X(0, 1)
        for t in range(7):
            rd_A(0, t, 0); rd_A(0, t, 1)
        rd_G(0)
        for k in range(2):
            rd_C(0, k, 0); rd_C(0, k, 1)

        def ut_src():
            def setup():
                a(f"s_lshl_b32 {sr(S_T0)}, {sr(S_WAVE)}, 11")
                a(f"s_add_u32 m0, {sr(S_T0)}, {L_UTS}")
                a(f"s_lshl_b32 {sr(S_L0)}, {sr(S_CB)}, 6")
                a(f"s_add_u32 {sr(S_L0)}, {sr(S_L0)}, {sr(S_X0)}")
                a(f"s_add_u32 {sr(S_L1)}, {sr(S_L0)}, {16384-1024}")
            return [setup,
                    lambda: a(f"buffer_load_dwordx4 v{VUS}, {sr(SRD_U,4)}, {sr(S_L0)} offen lds"),
                    lambda: tags.__setitem__("uts", a(f"buffer_load_dwordx4 v{VUS}, {sr(SRD_U,4)}, {sr(S_L1)} offen offset:1024 lds"))]

        tags = {}
        self.w2tag = {}

        def w2_load(st, t):
            ops = []
            if t == 0:
                ops.append(lambda: (a(f"s_lshl_b32 {sr(S_L0)}, {sr(S_SIG[st])}, 2"), a(f"s_add_u32 {sr(S_L0)}, {sr(S_L0)}, {sr(S_W2B)}")))
            ops.append(lambda: self.w2tag.__setitem__((st, t), a(
                f"buffer_load_dwordx4 {ar((st*4+t)*4,4)}, v{VW2}, {sr(SRD_WS,4)}, {sr(S_L0)} offen offset:{t*1024} sc1")))
            return ops
        self.w2_load = w2_load

        bg = Fill()
        bg2 = Fill()

        def w2_unit_ops():
            ops = [lambda: a.wait_vm(tag_w2u)]
            for tl in range(2):
                ops.append(lambda tl=tl: a(f"ds_read_b64_tr_b16 {vr(W2R+4*tl,2)}, v{VW2U} offset:{32*tl}"))
                ops.append(lambda tl=tl: tags.__setitem__("w2r", a(f"ds_read_b64_tr_b16 {vr(W2R+4*tl+2,2)}, v{VW2U} offset:{32*tl+1024}")))
            ops.append(lambda: (a(f"s_cmp_lt_u32 {sr(S_WG)}, 224"), a(f"s_cselect_b32 {sr(S_T7)}, {sr(S_T7)}, 0x7ffff000")))
            ops += [None] * 6
            ops.append(lambda: a.wait_lg(tags["w2r"]))
            ops.append(lambda: a(f"buffer_store_dwordx4 {vr(W2R,4)}, v{VW2}, {sr(SRD_WS,4)}, {sr(S_T7)} offen sc1"))
            ops += [None] * 3
            ops.append(lambda: tags.__setitem__("w2st", a(f"buffer_store_dwordx4 {vr(W2R+4,4)}, v{VW2}, {sr(SRD_WS,4)}, {sr(S_T7)} offen offset:1024 sc1")))
            return ops

        def sigma_ops():
            ops = [lambda: a(f"s_and_b32 {sr(S_T1)}, {sr(S_TB)}, 3"),
                   lambda: a(f"s_lshl_b32 {sr(S_T1)}, {sr(S_T1)}, 2"),
                   lambda: a(f"s_lshl_b32 {sr(S_T2)}, {sr(S_DB)}, 1"),
                   lambda: a(f"s_add_u32 {sr(S_T1)}, {sr(S_T1)}, {sr(S_T2)}")]
            if not o.get("rot2", True):
                ops.append(lambda: a(f"s_mov_b32 {sr(S_T1)}, 0"))
            for _ in range(2):
                ops.append(lambda: (a(f"s_cmp_ge_u32 {sr(S_T1)}, 14"), a(f"s_cselect_b32 {sr(S_T2)}, 14, 0"), a(f"s_sub_u32 {sr(S_T1)}, {sr(S_T1)}, {sr(S_T2)}")))
            ops.append(lambda: a(f"s_lshl_b32 {sr(S_SIG[0])}, {sr(S_T1)}, 10"))
            for st in range(1, 14):
                ops.append(lambda st=st: (a(f"s_add_u32 {sr(S_T1)}, {sr(S_SIG[st-1])}, 1024"), a(f"s_cmp_eq_u32 {sr(S_T1)}, {14*1024}"),
                                          a(f"s_cselect_b32 {sr(S_SIG[st])}, 0, {sr(S_T1)}")))
            return ops

        for s in range(16):
            nxt = s + 1 < 16
            if o.get("fine") and s in (0, 4, 8, 11, 12, 15):
                self.stamp(f"k{s}")
            if (s & 1) == 0:
                if s // 2 + 2 < 8:
                    bg.q += paced(x_ops(s // 2 + 2))
            else:
                for k in (s + 4, s + 5):
                    if k < 16:
                        bg.q += paced(w_ops(k))
            if s == 0:
                bg2.q += w2_unit_ops()
            if s == 2:
                bg2.q.append(lambda: tags.__setitem__("nonce", a(f"global_load_dwordx2 {vr(VNON,2)}, v{VZERO}, {sr(P_DBG,2)} sc1")))
            if s == 3:
                for k, p in enumerate((P_ARE, P_AIM, P_BRE, P_BIM, P_CRE, P_CIM)):
                    bg2.q += [lambda k=k, p=p: a(f"global_load_ushort v{KP+k}, v{VKO}, {sr(p,2)}"), None]
                bg2.q.append(lambda: a(f"global_load_ushort v{KP+6}, v{VKO1}, {sr(P_LOGDT,2)}"))
            if s == 5:
                assert not bg2.pending()
                a.wait_vm(tags["nonce"] if tags["nonce"][1] > tags["w2st"][1] else tags["w2st"])
                a(f"v_readfirstlane_b32 {sr(S_T0)}, v{VNON+1}")
                a(f"v_readfirstlane_b32 {sr(S_NONCE)}, v{VNON}")
                a(f"s_cmp_eq_u32 {sr(S_T0)}, 1")
                a("s_cbranch_scc1 L_nonce_ok")
                a(f"s_mov_b32 {sr(S_SPIN)}, {SPIN_MAX}")
                a.label("L_nonce")
                a(f"global_load_dwordx2 {vr(VNON,2)}, v{VZERO}, {sr(P_DBG,2)} sc1", count=False)
                a("s_waitcnt vmcnt(0)")
                a(f"v_readfirstlane_b32 {sr(S_T0)}, v{VNON+1}")
                a(f"v_readfirstlane_b32 {sr(S_NONCE)}, v{VNON}")
                a(f"s_sub_u32 {sr(S_SPIN)}, {sr(S_SPIN)}, 1")
                a(f"s_cmp_eq_u32 {sr(S_SPIN)}, 0")
                a("s_cbranch_scc1 L_nonce_ok")
                a(f"s_cmp_eq_u32 {sr(S_T0)}, 1")
                a("s_cbranch_scc0 L_nonce")
                a.label("L_nonce_ok")
                bg2.q += sigma_ops()
            if s == 6:
                a(f"s_cmp_lt_u32 {sr(S_WG)}, 224")
                a("s_cbranch_scc0 L_noflagw")
                a(f"s_lshl_b32 {sr(S_T0)}, {sr(S_WG)}, 5")
                a(f"s_add_u32 {sr(S_T0)}, {sr(S_T0)}, {WS_FLAGW}")
                self.flag_store(S_T0, T + 60)
                a.vm_issued -= 1
                a.label("L_noflagw")
            if s == 9:
                bg2.q.append(lambda: tags.__setitem__("b1", a(f"global_load_ushort v{VB1}, v{VB1O}, {sr(P_B1,2)}")))
                bg2.q += [None] * 3
                bg2.q.append(lambda: tags.__setitem__("fw", self.flag_load(VFW, VFA)))
            if s == 11:
                uo = ut_src()
                bg.q += [uo[0], uo[1], None, None, None, uo[2], None, None]
            if s == 12:
                self.flag_check("W", VFW, VFA, tags["fw"])
                for st in range(0, 4):
                    for t in range(4):
                        ops = w2_load(st, t)
                        bg.add(ops)
                        bg.q += [None] * (5 - len(ops))
            reads = [[] for _ in range(20)]
            if nxt:
                reads[0] = [lambda: a.wait_vm(ready_tag(s + 1))]
                reads[1] = [lambda: a("s_barrier")]
                reads[2] = [lambda: rd_X(s + 1, 0)]
                reads[3] = [lambda: rd_X(s + 1, 1)]
                for t in range(6):
                    reads[4 + 2 * t] = [lambda t=t: rd_A(s + 1, t, 0)]
                    reads[5 + 2 * t] = [lambda t=t: rd_A(s + 1, t, 1)]
                reads[16] = [lambda: rd_A(s + 1, 6, 0)]
                reads[17] = [lambda: rd_A(s + 1, 6, 1), lambda: rd_G(s + 1)]
                reads[18] = [lambda: rd_C(s + 1, 0, 0), lambda: rd_C(s + 1, 0, 1)]
                reads[19] = [lambda: rd_C(s + 1, 1, 0), lambda: rd_C(s + 1, 1, 1)]
                if ((s + 1) & 1) == 0:
                    ga = g_addr(s + 1)
                    for k in range(4):
                        reads[6 + 2 * k].append(ga[k])
            pend = dict(rd_tag)
            mf = []
            for t in range(7):
                for tt in range(2):
                    w = pend[("A", min(t + 1, 6))] if (tt == 0 and t % 2 == 0) else None
                    mf.append((w, f"{MF} {vr(acc(t,tt),4)}, {vr(AF+4*t,4)}, {vr(X(s,tt),4)}, {vr(acc(t,tt),4)}"))
            for tt in range(2):
                mf.append((pend[("C", 1)] if tt == 0 else None, f"{MF} {vr(ACCS+4*tt,4)}, {vr(GF,4)}, {vr(X(s,tt),4)}, {vr(ACCS+4*tt,4)}"))
            for k in range(2):
                mf.append((None, f"{MF} {vr(ACCC+4*k,4)}, {vr(AC+4*k,4)}, {vr(ONEB,4)}, {vr(ACCC+4*k,4)}"))
            for tt in range(2):
                mf.append((None, f"{MF} {vr(ACCG+4*tt,4)}, {vr(X(s,tt),4)}, {vr(X(s,tt),4)}, {vr(ACCG+4*tt,4)}"))
            for j, (w, text) in enumerate(mf):
                if w is not None:
                    a.wait_lg(w)
                a(text)
                for r in reads[j]:
                    r()
                if j >= 2:
                    bg.step()
                    if j % 2 == 1:
                        bg2.step()
            if nxt:
                bg.step(2)
        self.stamp("gemm1")

        late = Fill()
        late.q = [(lambda op=op: op()) for op in bg.pending()]
        assert not bg2.pending()
        for st in range(4, 14):
            for t in range(4):
                late.q.append(lambda ops=self.w2_load(st, t): [op() for op in ops])
        self.late = late
        a0 = a
        a = Paced(a0, late, 13)
        a.wait_vm(tags["b1"])
        a(f"v_lshlrev_b32 v{VB1}, 16, v{VB1}")
        a(f"v_and_b32 v{T+3}, 127, v{V_TID}")
        a(f"v_lshlrev_b32 v{T+3}, 2, v{T+3}")
        a(f"v_add_u32 v{T+3}, {L_B1}, v{T+3}")
        a(f"ds_write_b32 v{T+3}, v{VB1}")
        CS, B1 = AF, AF + 28
        a(f"v_cmp_eq_u32 vcc, 0, v{V_I}")
        a(f"s_lshl_b32 {sr(S_T0)}, {sr(S_WAVE)}, 7")
        a(f"s_add_u32 {sr(S_T0)}, {sr(S_T0)}, {L_CS}")
        a(f"v_lshl_add_u32 v{T}, v{V_G}, 4, {sr(S_T0)}")
        a(f"v_and_b32 v{T+1}, 3, v{V_I}")
        a(f"v_cmp_eq_u32 {sr(S_M1,2)}, 1, v{T+1}")
        a(f"v_cmp_eq_u32 {sr(S_M2,2)}, 2, v{T+1}")
        a(f"v_cmp_eq_u32 {sr(S_M3,2)}, 3, v{T+1}")
        a(f"v_lshrrev_b32 v{T+2}, 2, v{V_I}")
        a(f"v_lshl_add_u32 v{T+2}, v{T+2}, 4, v{V_I}")
        a(f"v_lshlrev_b32 v{T+2}, 2, v{T+2}")
        a0(f"s_and_saveexec_b64 {sr(S_EX,2)}, vcc")
        a0(f"ds_write_b128 v{T}, {vr(ACCC,4)}")
        a0(f"ds_write_b128 v{T}, {vr(ACCC+4,4)} offset:64")
        a0(f"s_mov_b64 exec, {sr(S_EX,2)}")
        for tt in range(2):
            g0 = ACCG + 4 * tt
            a(f"v_cndmask_b32 v{T+3+tt}, v{g0}, v{g0+1}, {sr(S_M1,2)}")
            a(f"v_cndmask_b32 v{T+3+tt}, v{T+3+tt}, v{g0+2}, {sr(S_M2,2)}")
            a(f"v_cndmask_b32 v{T+3+tt}, v{T+3+tt}, v{g0+3}, {sr(S_M3,2)}")
        for tt in range(2):
            a(f"ds_bpermute_b32 v{T+5+tt}, v{T+2}, v{T+3+tt}")
        a("s_waitcnt lgkmcnt(0)")
        a("s_barrier")
        a(f"v_lshlrev_b32 v{T+1}, 4, v{V_G}")
        a(f"v_add_u32 v{T+1}, {L_CS}, v{T+1}")
        for t in range(7):
            a(f"ds_read_b128 {vr(CS+4*t,4)}, v{T+1} offset:{64*t}")
            a(f"ds_read_b128 {vr(B1+4*t,4)}, v{T+1} offset:{L_B1-L_CS+64*t}")
        inv = f2u(1.0 / 512)
        RS, NM, GV = T + 16, T + 18, T + 20
        M_, V_, W_, GW = T + 8, T + 10, T + 12, T + 14
        both = lambda fn: [a(fn(tt)) for tt in range(2)]
        both(lambda tt: f"v_mul_f32 v{M_+tt}, {inv:#x}, v{ACCS+4*tt}")
        both(lambda tt: f"v_mul_f32 v{V_+tt}, {inv:#x}, v{T+5+tt}")
        both(lambda tt: f"v_cvt_pk_bf16_f32 v{GW+tt}, v{ACCS+4*tt+1}, v{ACCS+4*tt+1}")
        both(lambda tt: f"v_fma_f32 v{V_+tt}, -v{M_+tt}, v{M_+tt}, v{V_+tt}")
        both(lambda tt: f"v_and_b32 v{GW+tt}, 0xffff0000, v{GW+tt}")
        both(lambda tt: f"v_max_f32 v{V_+tt}, 0, v{V_+tt}")
        both(lambda tt: f"v_mul_f32 v{GW+tt}, {f2u(-LOG2E):#x}, v{GW+tt}")
        both(lambda tt: f"v_cvt_pk_bf16_f32 v{W_+tt}, v{M_+tt}, v{V_+tt}")
        both(lambda tt: f"v_exp_f32 v{GW+tt}, v{GW+tt}")
        both(lambda tt: f"v_lshlrev_b32 v{M_+tt}, 16, v{W_+tt}")
        both(lambda tt: f"v_and_b32 v{V_+tt}, 0xffff0000, v{W_+tt}")
        both(lambda tt: f"v_add_f32 v{GW+tt}, 1.0, v{GW+tt}")
        both(lambda tt: f"v_add_f32 v{V_+tt}, {f2u(1e-5):#x}, v{V_+tt}")
        both(lambda tt: f"v_rcp_f32 v{GW+tt}, v{GW+tt}")
        both(lambda tt: f"v_cvt_pk_bf16_f32 v{W_+tt}, v{V_+tt}, v{V_+tt}")
        both(lambda tt: f"v_and_b32 v{V_+tt}, 0xffff0000, v{W_+tt}")
        both(lambda tt: f"v_cvt_pk_bf16_f32 v{GW+tt}, v{GW+tt}, v{GW+tt}")
        both(lambda tt: f"v_sqrt_f32 v{V_+tt}, v{V_+tt}")
        both(lambda tt: f"v_and_b32 v{GV+tt}, 0xffff0000, v{GW+tt}")
        both(lambda tt: f"v_cvt_pk_bf16_f32 v{W_+tt}, v{V_+tt}, v{V_+tt}")
        both(lambda tt: f"v_and_b32 v{V_+tt}, 0xffff0000, v{W_+tt}")
        both(lambda tt: f"v_rcp_f32 v{RS+tt}, v{V_+tt}")
        both(lambda tt: f"v_mul_f32 v{NM+tt}, -v{M_+tt}, v{RS+tt}")
        a = a0
        a(f"s_cmp_lg_u32 {sr(S_CB)}, 0")
        a("s_cbranch_scc1 L_nogate")
        a(f"s_lshl_b32 {sr(S_T0)}, {sr(S_RB)}, 2")
        a(f"s_add_u32 {sr(S_T0)}, {sr(S_T0)}, {sr(S_WAVE)}")
        a(f"s_lshl_b32 {sr(S_T0)}, {sr(S_T0)}, 7")
        a(f"s_add_u32 {sr(S_T0)}, {sr(S_T0)}, {WS_G}")
        a(f"v_lshlrev_b32 v{T+1}, 2, v{V_I}")
        a(f"s_mov_b64 {sr(S_EX,2)}, exec")
        a("s_mov_b64 exec, 0xffff")
        a(f"buffer_store_dword v{GV}, v{T+1}, {sr(SRD_WS,4)}, {sr(S_T0)} offen sc1", count=False)
        a(f"buffer_store_dword v{GV+1}, v{T+1}, {sr(SRD_WS,4)}, {sr(S_T0)} offen offset:64 sc1", count=False)
        a(f"s_mov_b64 exec, {sr(S_EX,2)}")
        a.label("L_nogate")

        c1 = -2.0 * LOG2E * math.sqrt(2.0 / math.pi)
        c2 = c1 * 0.044715
        VC1, VONE, VH, VTA = T + 22, T + 24, T + 26, T + 27
        a(f"v_mov_b32 v{VC1}, {f2u(c1):#x}")
        a(f"v_mov_b32 v{VC1+1}, {f2u(c1):#x}")
        a(f"v_mov_b32 v{VONE}, 1.0")
        a(f"v_mov_b32 v{VONE+1}, 1.0")
        a(f"s_mov_b32 {sr(S_C2)}, {f2u(c2):#x}")
        a(f"s_mov_b32 {sr(S_C2+1)}, {f2u(c2):#x}")
        a(f"s_lshl_b32 {sr(S_T0)}, {sr(S_RB)}, 3")
        a(f"s_lshl_b32 {sr(S_T1)}, {sr(S_WAVE)}, 1")
        a(f"s_add_u32 {sr(S_T0)}, {sr(S_T0)}, {sr(S_T1)}")
        a(f"s_lshl_b32 {sr(S_T0)}, {sr(S_T0)}, 3")
        a(f"s_lshr_b32 {sr(S_T1)}, {sr(S_CB)}, 1")
        a(f"s_add_u32 {sr(S_T0)}, {sr(S_T0)}, {sr(S_T1)}")
        a(f"s_mul_i32 {sr(S_T0)}, {sr(S_T0)}, 7168")
        a(f"s_add_u32 {sr(S_T0)}, {sr(S_T0)}, {WS_H}")
        a(f"s_and_b32 {sr(S_T1)}, {sr(S_CB)}, 1")
        a(f"s_mul_i32 {sr(S_T2)}, {sr(S_T1)}, 3072")
        a(f"s_add_u32 {sr(S_T4)}, {sr(S_T0)}, {sr(S_T2)}")
        a(f"s_add_u32 {sr(S_T5)}, {sr(S_T4)}, {8*7168}")
        a(f"s_lshl_b32 {sr(S_T2)}, {sr(S_T1)}, 3")
        a(f"s_add_u32 {sr(S_T6)}, {sr(S_T0)}, {sr(S_T2)}")
        a(f"s_add_u32 {sr(S_T6)}, {sr(S_T6)}, 6144")
        a(f"s_add_u32 {sr(S_T7)}, {sr(S_T6)}, {8*7168}")
        a(f"v_lshlrev_b32 v{VH}, 4, v{V_L}")
        fill = Fill()
        a("s_waitcnt lgkmcnt(0)")
        self.stamp("stats")
        W, OUTR = T + 28, T + 56
        nbuf = 0
        cnt = [0]

        def g(text):
            a(text)
            cnt[0] += 1
            if "gelu_w2" in o["exp"] and cnt[0] % 64 == 0:
                late.step()

        for tt in range(2):
            for P in range(4):
                tiles = (2 * P, 2 * P + 1) if P < 3 else (6,)
                ob = OUTR + 4 * (nbuf & 1)
                nbuf += 1
                jobs = [(t, h) for t in tiles for h in range(2)]
                xs = [W + 6 * j for j in range(len(jobs))]
                for j, (t, h) in enumerate(jobs):
                    g(f"v_pk_fma_f32 {vr(xs[j],2)}, {vr(CS+4*t+2*h,2)}, {vr(NM,2)}, {vr(B1+4*t+2*h,2)} op_sel:[0,{tt},0] op_sel_hi:[1,{tt},1]")
                for j, (t, h) in enumerate(jobs):
                    g(f"v_pk_fma_f32 {vr(xs[j],2)}, {vr(acc(t,tt)+2*h,2)}, {vr(RS,2)}, {vr(xs[j],2)} op_sel:[0,{tt},0] op_sel_hi:[1,{tt},1]")
                for x in xs:
                    g(f"v_pk_mul_f32 {vr(x+2,2)}, {vr(x,2)}, {vr(x,2)}")
                for x in xs:
                    g(f"v_pk_fma_f32 {vr(x+2,2)}, {vr(x+2,2)}, {sr(S_C2,2)}, {vr(VC1,2)}")
                for x in xs:
                    g(f"v_pk_mul_f32 {vr(x+2,2)}, {vr(x+2,2)}, {vr(x,2)}")
                for x in xs:
                    g(f"v_exp_f32 v{x+2}, v{x+2}")
                    g(f"v_exp_f32 v{x+3}, v{x+3}")
                for x in xs:
                    g(f"v_pk_add_f32 {vr(x+2,2)}, {vr(x+2,2)}, {vr(VONE,2)}")
                for x in xs:
                    g(f"v_rcp_f32 v{x+2}, v{x+2}")
                    g(f"v_rcp_f32 v{x+3}, v{x+3}")
                for x in xs:
                    g(f"v_pk_mul_f32 {vr(x,2)}, {vr(x,2)}, {vr(x+2,2)}")
                for j, x in enumerate(xs):
                    g(f"v_cvt_pk_bf16_f32 v{ob+j}, v{x}, v{x+1}")
                if P < 3:
                    a(f"buffer_store_dwordx4 {vr(ob,4)}, v{VH}, {sr(SRD_WS,4)}, {sr(S_T4 if tt == 0 else S_T5)} offen offset:{1024*P} sc1")
                else:
                    a(f"buffer_store_dwordx2 {vr(ob,2)}, v{VH}, {sr(SRD_WS,4)}, {sr(S_T6 if tt == 0 else S_T7)} offen sc1")
        self.stamp("gelu")

        a(f"s_lshl_b32 {sr(S_T0)}, {sr(S_WAVE)}, 11")
        a(f"s_add_u32 {sr(S_T0)}, {sr(S_T0)}, {L_UTS}")
        a(f"v_lshrrev_b32 v{T+1}, 2, v{V_I}")
        a(f"v_lshl_add_u32 v{T+1}, v{V_G}, 3, v{T+1}")
        a(f"v_lshlrev_b32 v{T+1}, 6, v{T+1}")
        a(f"v_and_b32 v{T+2}, 3, v{V_I}")
        a(f"v_lshl_add_u32 v{T+1}, v{T+2}, 3, v{T+1}")
        a(f"v_add_u32 v{T+1}, {sr(S_T0)}, v{T+1}")
        a.wait_vm(tags["uts"])
        for ct in range(2):
            a(f"ds_read_b64_tr_b16 {vr(T+4+4*ct,2)}, v{T+1} offset:{32*ct}")
            a(f"ds_read_b64_tr_b16 {vr(T+6+4*ct,2)}, v{T+1} offset:{32*ct+256}")
        a(f"v_lshlrev_b32 v{T+2}, 12, v{V_I}")
        a(f"v_lshl_add_u32 v{T+2}, v{V_G}, 4, v{T+2}")
        a(f"s_lshl_b32 {sr(S_T0)}, {sr(S_CB)}, 17")
        a(f"s_lshl_b32 {sr(S_T1)}, {sr(S_RB)}, 8")
        a(f"s_add_u32 {sr(S_T0)}, {sr(S_T0)}, {sr(S_T1)}")
        a(f"s_lshl_b32 {sr(S_T1)}, {sr(S_WAVE)}, 6")
        a(f"s_add_u32 {sr(S_T0)}, {sr(S_T0)}, {sr(S_T1)}")
        a(f"s_add_u32 {sr(S_T0)}, {sr(S_T0)}, {WS_UT}")
        a(f"s_add_u32 {sr(S_T1)}, {sr(S_T0)}, {16*4096}")
        a("s_waitcnt lgkmcnt(0)")
        a(f"buffer_store_dwordx4 {vr(T+4,4)}, v{T+2}, {sr(SRD_WS,4)}, {sr(S_T0)} offen sc1")
        self.tag_pubA = a(f"buffer_store_dwordx4 {vr(T+8,4)}, v{T+2}, {sr(SRD_WS,4)}, {sr(S_T1)} offen sc1")
        self.VW2 = VW2
        VTA = T + 14
        a(f"s_lshr_b32 {sr(S_T0)}, {sr(S_WAVE)}, 1")
        a(f"s_mul_i32 {sr(S_T0)}, {sr(S_T0)}, {32*TROW}")
        a(f"s_and_b32 {sr(S_T1)}, {sr(S_WAVE)}, 1")
        a(f"s_lshl_b32 {sr(S_T1)}, {sr(S_T1)}, 8")
        a(f"s_add_u32 {sr(S_T0)}, {sr(S_T0)}, {sr(S_T1)}")
        a(f"v_lshl_add_u32 v{VTA}, v{V_L}, 2, {sr(S_T0)}")
        self.k_tables(KP, T + 16, VTA, late if 'tab_w2' in o['exp'] else None, 26)
        self.stamp("tables2")

    def build(self):
        a, o = self.a, self.o
        self.prologue()
        self.phase_a()
        import gen2_bc
        gen2_bc.phase_b(self)
        gen2_bc.phase_c(self)
        a("s_waitcnt vmcnt(0) lgkmcnt(0)")
        if o.get("clk"):
            a("s_memtime s[90:91]")
            a("s_memrealtime s[86:87]")
            a("s_waitcnt lgkmcnt(0)")
            a("s_sub_u32 s90, s90, s98")
            a("s_sub_u32 s86, s86, s100")
            a(f"s_and_b32 {sr(S_T0)}, {sr(S_WG)}, 0x3f")
            a(f"s_or_b32 {sr(S_T0)}, {sr(S_T0)}, {sr(S_WAVE)}")
            a(f"s_cmp_lg_u32 {sr(S_T0)}, 0")
            a("s_cbranch_scc1 L_noclk")
            a(f"s_lshr_b32 {sr(S_T0)}, {sr(S_WG)}, 6")
            a(f"s_lshl_b32 {sr(S_T0)}, {sr(S_T0)}, 4")
            a(f"s_add_u32 {sr(S_T0)}, {sr(S_T0)}, 8")
            a(f"v_mov_b32 v4, {sr(S_T0)}")
            a("v_mov_b32 v6, s90")
            a("v_mov_b32 v7, s86")
            a("v_mov_b32 v8, s100")
            a(f"global_store_dwordx3 v4, v[6:8], {sr(P_DBG,2)} offset:0", count=False)
            a("s_waitcnt vmcnt(0)")
            a.label("L_noclk")
        self.stamp("end")
        self.stamp_flush()
        a.label("L_end")
        a("s_endpgm")
        body = a.text()
        head = open("gated_mix__ssm_conv_s4__mixer_channel_mlp__prompt.s.ref").read().split("; Override launch")[0]
        head += f"; @launch grid=(256,1,1) block=(256,1,1) lds={LDS_TOTAL}\n"
        pf = (8 * a.icount // 64 + 127) // 128 + 1
        return head + f""".amdgcn_target "amdgcn-amd-amdhsa--gfx950"
.set PF_LINES, {pf}
.text
.globl {KNAME}
.p2align 8
.type {KNAME},@function
{KNAME}:
{body}.section .rodata,"a"
.p2align 6
.amdhsa_kernel {KNAME}
  .amdhsa_next_free_vgpr 512
  .amdhsa_next_free_sgpr 102
  .amdhsa_accum_offset 256
  .amdhsa_group_segment_fixed_size 0
  .amdhsa_kernarg_size 144
  .amdhsa_user_sgpr_count 2
  .amdhsa_user_sgpr_kernarg_segment_ptr 1
  .amdhsa_system_sgpr_workgroup_id_x 1
.end_amdhsa_kernel
"""


def main():
    ap = argparse.ArgumentParser()
    ap.add_argument("-o", default="k.s")
    ap.add_argument("--stamps", action="store_true")
    ap.add_argument("--exp", default="")
    ap.add_argument("--dump", default="")
    ap.add_argument("--clk", action="store_true")
    ap.add_argument("--norot", action="store_true")
    ap.add_argument("--rt", action="store_true")
    ap.add_argument("--rot2", action="store_true")
    ap.add_argument("--fine", action="store_true")
    args = ap.parse_args()
    opts = dict(stamps=args.stamps, exp=set(args.exp.split(",")), dump=args.dump, clk=args.clk, rot=not args.norot, rt=args.rt, fine=args.fine, rot2=args.rot2)
    g = Gen(opts)
    txt = g.build()
    open(args.o, "w").write(txt)
    if args.stamps:
        json.dump(opts["stamp_names"], open(args.o + ".stamps.json", "w"))
    print(f"wrote {args.o}: {g.a.icount} instructions, {g.a.nops_added} auto nops, {len(txt)} bytes")


if __name__ == "__main__":
    main()
```

```python
from asmlib import vr, ar, sr
from gen2 import *


def dump_lds(self, name, base, nbytes):
    if self.o.get("dump") != name:
        return
    a = self.a
    a("s_waitcnt vmcnt(0) lgkmcnt(0)")
    a("s_barrier")
    a(f"v_lshlrev_b32 v250, 4, v{V_TID}")
    a(f"s_mul_i32 {sr(S_T0)}, {sr(S_WG)}, 65536")
    a(f"s_add_u32 {sr(S_T0)}, {sr(S_T0)}, {WS_DUMP}")
    for off in range(0, nbytes, 4096):
        a(f"v_add_u32 v251, {base + off}, v250")
        a("ds_read_b128 v[244:247], v251")
        a("s_waitcnt lgkmcnt(0)")
        a(f"buffer_store_dwordx4 v[244:247], v250, {sr(SRD_WS,4)}, {sr(S_T0)} offen", count=False)
        a(f"s_add_u32 {sr(S_T0)}, {sr(S_T0)}, 4096")
        a("s_waitcnt vmcnt(0)")
    a("s_barrier")


def phase_b(self):
    o = self.o
    late = self.late
    a = Paced(self.a, late, 10 ** 9)
    R = 32
    FA, FB, D0, D1 = 64, 128, R + 4, R + 8
    VA_, VB_ = R + 12, R + 13
    a(f"s_lshr_b32 {sr(S_T0)}, {sr(S_WAVE)}, 1")
    a(f"s_mul_i32 {sr(S_T0)}, {sr(S_T0)}, {32*TROW}")
    a(f"v_mul_u32_u24 v{VA_}, {TROW}, v{V_I}")
    a(f"v_lshl_add_u32 v{VA_}, v{V_G}, 4, v{VA_}")
    a(f"v_add_u32 v{VA_}, {sr(S_T0)}, v{VA_}")
    a(f"s_and_b32 {sr(S_T1)}, {sr(S_WAVE)}, 1")
    a(f"s_mul_i32 {sr(S_T1)}, {sr(S_T1)}, {16*TROW}")
    a(f"s_add_u32 {sr(S_T1)}, {sr(S_T1)}, {L_LO}")
    a(f"v_add_u32 v{VB_}, {sr(S_T1)}, v{VA_}")
    for k in range(8):
        a(f"v_mov_b32 v{D0+k}, 0")
    a.wait_vm(self.tag_pubA)
    a("s_waitcnt lgkmcnt(0)")
    a("s_barrier")
    a.asm(f"s_lshl_b32 {sr(S_T0)}, {sr(S_RB)}, 4")
    a.asm(f"s_add_u32 {sr(S_T0)}, {sr(S_T0)}, {sr(S_CB)}")
    a.asm(f"s_lshl_b32 {sr(S_T0)}, {sr(S_T0)}, 5")
    a.asm(f"s_add_u32 {sr(S_T0)}, {sr(S_T0)}, {WS_FLAGA}")
    self.flag_store(S_T0, R + 30)
    self.stamp("flagA")
    a.period = 17
    tg = {}

    def kmf(k2):
        a.wait_lg(tg[k2])
        a(f"{MF} {vr(D0,4)}, {vr(FA+8*k2,4)}, {vr(FB+4*k2,4)}, {vr(D0,4)}")
        a(f"{MF} {vr(D1,4)}, {vr(FA+8*k2+4,4)}, {vr(FB+4*k2,4)}, {vr(D1,4)}")

    for kap in range(8):
        a(f"ds_read_b128 {vr(FB+4*kap,4)}, v{VB_} offset:{64*kap}")
        a(f"ds_read_b128 {vr(FA+8*kap,4)}, v{VA_} offset:{L_HI + 64*kap}")
        tg[kap] = a(f"ds_read_b128 {vr(FA+8*kap+4,4)}, v{VA_} offset:{L_HI + 16*TROW + 64*kap}")
        if kap >= 3:
            kmf(kap - 3)
    J, SH, AD, A0, A1, A2_, TB = R + 14, R + 15, R + 16, R + 17, R + 18, R + 19, R + 20
    a(f"s_and_b32 {sr(S_T1)}, {sr(S_WAVE)}, 1")
    a(f"s_lshl_b32 {sr(S_T1)}, {sr(S_T1)}, 4")
    a(f"v_add_u32 v{J}, {sr(S_T1)}, v{V_I}")
    a(f"s_lshr_b32 {sr(S_T0)}, {sr(S_WAVE)}, 1")
    a(f"s_lshl_b32 {sr(S_T0)}, {sr(S_T0)}, 11")
    a(f"s_add_u32 {sr(S_T4)}, {sr(S_T0)}, {L_TAB}")
    a(f"v_subrev_u32 v{SH}, 1, v{V_G}")
    a(f"v_max_i32 v{SH}, 0, v{SH}")
    a(f"v_sub_u32 v{SH}, 3, v{SH}")
    a(f"v_lshlrev_b32 v{A0}, v{SH}, v{J}")
    a(f"v_mov_b32 v{AD}, 0")
    for gval, add in ((1, 4), (2, 256), (3, 384)):
        a(f"v_mov_b32 v{TB}, {add}")
        a(f"v_cmp_eq_u32 vcc, {gval}, v{V_G}")
        a(f"v_cndmask_b32 v{AD}, v{AD}, v{TB}, vcc")
    a(f"v_add_u32 v{A0}, v{A0}, v{AD}")
    a(f"v_lshl_add_u32 v{A0}, v{A0}, 1, {sr(S_T4)}")
    a(f"v_mov_b32 v{A1}, 4")
    a(f"v_mov_b32 v{TB}, 128")
    a(f"v_cndmask_b32 v{A1}, v{A1}, v{TB}, vcc")
    a(f"v_add_u32 v{A1}, v{A1}, v{A0}")
    for k2 in range(5, 8):
        kmf(k2)
    a(f"v_mov_b32 v{A2_}, 1600")
    a(f"v_lshlrev_b32 v{TB}, 1, v{J}")
    a(f"v_add_u32 v{TB}, 1024, v{TB}")
    a(f"v_cmp_eq_u32 vcc, 0, v{V_G}")
    a(f"v_cndmask_b32 v{A2_}, v{A2_}, v{TB}, vcc")
    a(f"v_lshl_add_u32 v{TB}, v{V_G}, 8, v{J}")
    a(f"v_mov_b32 v{AD}, 1280")
    a(f"v_cmp_eq_u32 vcc, 0x100, v{TB}")
    a(f"v_cndmask_b32 v{A2_}, v{A2_}, v{AD}, vcc")
    a(f"v_add_u32 v{A2_}, {sr(S_T4)}, v{A2_}")
    Z = R + 28
    for k in range(4):
        a(f"v_mov_b32 v{Z+k}, 0")
    a(f"v_mov_b32 v{TB}, {sr(S_T4)}")
    a(f"ds_write_b16 v{TB}, v{Z} offset:{2*TAB_ZERO}")
    a(f"v_and_b32 v{TB}, 15, v{V_L}")
    a(f"v_lshrrev_b32 v{AD}, 1, v{TB}")
    a(f"v_mul_u32_u24 v{AD}, {KCS}, v{AD}")
    a(f"v_and_b32 v{TB}, 1, v{TB}")
    a(f"v_lshl_add_u32 v{AD}, v{TB}, 4, v{AD}")
    a(f"v_add_u32 v{AD}, {L_KC + 4096}, v{AD}")
    a(f"ds_write_b128 v{AD}, {vr(Z,4)}")
    a(f"v_lshrrev_b32 v{AD}, 5, v{V_L}")
    a(f"v_mul_u32_u24 v{AD}, {UBS}, v{AD}")
    a(f"v_and_b32 v{TB}, 31, v{V_L}")
    a(f"v_lshl_add_u32 v{AD}, v{TB}, 4, v{AD}")
    a(f"v_add_u32 v{AD}, {L_UB}, v{AD}")
    a(f"ds_write_b128 v{AD}, {vr(Z,4)}")
    PKD = R + 22
    a(f"v_cvt_pk_bf16_f32 v{PKD}, v{D0}, v{D0+1}")
    a(f"v_cvt_pk_bf16_f32 v{PKD+1}, v{D0+2}, v{D0+3}")
    a(f"v_cvt_pk_bf16_f32 v{PKD+2}, v{D1}, v{D1+1}")
    a(f"v_cvt_pk_bf16_f32 v{PKD+3}, v{D1+2}, v{D1+3}")
    a(f"ds_write_b32 v{A0}, v{PKD}")
    a(f"ds_write_b32 v{A1}, v{PKD+1}")
    a(f"ds_write_b16 v{A2_}, v{PKD+2}")
    a(f"ds_write_b16_d16_hi v{A2_}, v{PKD+2} offset:64")
    a(f"ds_write_b16 v{A2_}, v{PKD+3} offset:128")
    a(f"ds_write_b16_d16_hi v{A2_}, v{PKD+3} offset:192")
    GA = 64
    LI, TX, TY = 76, 77, 78
    a(f"v_lshlrev_b32 v{LI}, 3, v{V_TID}")
    a(f"v_sub_u32 v{LI}, 2047, v{LI}")
    for i in range(0, 12, 2):
        a(f"v_subrev_u32 v{GA+i}, {i}, v{LI}")
        a(f"v_subrev_u32 v{GA+i+1}, {i+1}, v{LI}")
        a(f"v_max_i32 v{TX}, 128, v{GA+i}")
        a(f"v_max_i32 v{TY}, 128, v{GA+i+1}")
        a(f"v_cvt_f32_u32 v{TX}, v{TX}")
        a(f"v_cvt_f32_u32 v{TY}, v{TY}")
        a(f"v_cvt_pk_bf16_f32 v{TX}, v{TX}, v{TY}")
        a(f"v_lshrrev_b32 v{TY}, 16, v{TX}")
        a(f"v_and_b32 v{TX}, 0xffff, v{TX}")
        a(f"v_subrev_u32 v{TX}, 0x4280, v{TX}")
        a(f"v_subrev_u32 v{TY}, 0x4280, v{TY}")
        a(f"v_min_u32 v{GA+i}, v{GA+i}, v{TX}")
        a(f"v_min_u32 v{GA+i+1}, v{GA+i+1}, v{TY}")
    a(f"v_mov_b32 v{TX}, {TAB_ZERO}")
    a(f"v_cmp_eq_u32 vcc, 255, v{V_TID}")
    for i in (8, 9, 10):
        a(f"v_cndmask_b32 v{GA+i}, v{GA+i}, v{TX}, vcc")
    a(f"s_mov_b32 {sr(S_T0)}, {L_TAB}")
    for i in range(11):
        a(f"v_lshl_add_u32 v{GA+i}, v{GA+i}, 1, {sr(S_T0)}")
    a("s_waitcnt lgkmcnt(0)")
    a("s_barrier")
    self.stamp("ktab")
    dump_lds(self, "tab", L_TAB, 4096)

    S_HIM = S_T7
    a(f"s_mov_b32 {sr(S_HIM)}, 0xffff0000")
    DD, EE, HH = 80, 96, 112
    VK0, VK2 = 128, 129
    VF, VFV, UR = 132, 133, 136
    a(f"v_lshlrev_b32 v{VK0}, 4, v{V_TID}")
    a(f"v_add_u32 v{VK0}, {L_KC}, v{VK0}")
    tgs = {}
    for c in range(2):
        d, hh = DD + 8 * c, HH + 8 * c
        for i in range(11):
            if i & 1:
                tgs[c] = a(f"ds_read_u16_d16_hi v{hh + i//2}, v{GA+i} offset:{2048*c}")
            else:
                tgs[c] = a(f"ds_read_u16 v{d + i//2}, v{GA+i} offset:{2048*c}")
    a.asm(f"s_lshr_b32 {sr(S_T0)}, {sr(S_WG)}, 4")
    a.asm(f"s_lshl_b32 {sr(S_T0)}, {sr(S_T0)}, 5")
    a.asm(f"v_lshlrev_b32 v{VF}, 9, v{V_I}")
    a.asm(f"v_add_u32 v{VF}, {sr(S_T0)}, v{VF}")
    a.asm(f"s_lshr_b32 {sr(S_T0)}, {sr(S_TB)}, 1")
    a.asm(f"s_lshl_b32 {sr(S_T0)}, {sr(S_T0)}, 9")
    a.asm(f"v_lshlrev_b32 v{VFV}, 5, v{V_I}")
    a.asm(f"v_add_u32 v{VFV}, {sr(S_T0)}, v{VFV}")
    a.asm(f"v_and_b32 v{VF+2}, 1, v{V_G}")
    a.asm(f"v_cmp_eq_u32 vcc, 1, v{VF+2}")
    a.asm(f"v_cndmask_b32 v{VF}, v{VF}, v{VFV}, vcc")
    a.asm(f"v_add_u32 v{VF}, {WS_FLAGA}, v{VF}")
    for c in range(2):
        d, e, hh = DD + 8 * c, EE + 8 * c, HH + 8 * c
        a.wait_lg(tgs[c])
        for k in range(5):
            a(f"v_and_or_b32 v{d+k}, v{hh+k}, {sr(S_HIM)}, v{d+k}")
        for k in range(4):
            a(f"v_alignbit_b32 v{e+k}, v{d+k+1}, v{d+k}, 16")
        a(f"v_alignbit_b32 v{e+4}, v{d+5}, v{d+4}, 16")
        base = c * 4 * KCS
        a(f"ds_write_b128 v{VK0}, {vr(d,4)} offset:{base}")
        a(f"ds_write_b128 v{VK0}, {vr(e,4)} offset:{base + KCS}")
        a(f"v_add_u32 v{VK2}, {base + 2*KCS}, v{VK0}")
        a(f"ds_write2_b32 v{VK2}, v{d+1}, v{d+2} offset0:0 offset1:1")
        a(f"ds_write2_b32 v{VK2}, v{d+3}, v{d+4} offset0:2 offset1:3")
        a(f"v_add_u32 v{VK2+1}, {base + 3*KCS}, v{VK0}")
        a(f"ds_write2_b32 v{VK2+1}, v{e+1}, v{e+2} offset0:0 offset1:1")
        a(f"ds_write2_b32 v{VK2+1}, v{e+3}, v{e+4} offset0:2 offset1:3")
        if c == 0:
            tag_fu = self.flag_load(VFV, VF)
    self.stamp("kcopies")
    CA = 32
    TA = (64, 96)
    VT, VU, B_, S_ = 24, 25, 26, 27
    a(f"s_lshr_b32 {sr(S_T0)}, {sr(S_WAVE)}, 1")
    a(f"s_and_b32 {sr(S_T1)}, {sr(S_WAVE)}, 1")
    a(f"v_sub_u32 v{S_}, 3, v{V_I}")
    a(f"v_and_b32 v{S_}, 3, v{S_}")
    a(f"v_sub_u32 v{B_}, 2031, v{V_I}")
    a(f"v_lshl_add_u32 v{B_}, v{V_G}, 3, v{B_}")
    a(f"v_sub_u32 v{B_}, v{B_}, v{S_}")
    a(f"v_lshlrev_b32 v{B_}, 1, v{B_}")
    a(f"v_mul_u32_u24 v{S_}, {KCS}, v{S_}")
    a(f"v_add_u32 v{VT}, v{B_}, v{S_}")
    a(f"s_mul_i32 {sr(S_T2)}, {sr(S_T0)}, {4*KCS}")
    a(f"s_lshl_b32 {sr(S_T4)}, {sr(S_T1)}, 8")
    a(f"s_sub_u32 {sr(S_T2)}, {sr(S_T2)}, {sr(S_T4)}")
    a(f"s_add_u32 {sr(S_T2)}, {sr(S_T2)}, {L_KC - 64*59}")
    a(f"v_add_u32 v{VT}, {sr(S_T2)}, v{VT}")
    a(f"v_lshlrev_b32 v{VU}, 5, v{V_I}")
    a(f"v_lshl_add_u32 v{VU}, v{V_G}, 4, v{VU}")
    a(f"s_mul_i32 {sr(S_T2)}, {sr(S_T0)}, {UBS}")
    a(f"s_sub_u32 {sr(S_T2)}, {sr(S_T2)}, {sr(S_T4)}")
    a(f"s_add_u32 {sr(S_T2)}, {sr(S_T2)}, {L_UB + 512 - 32 - 64*3}")
    a(f"v_add_u32 v{VU}, {sr(S_T2)}, v{VU}")
    late.drain()
    a.period = 10 ** 9
    self.stamp("w2done")
    self.flag_check("U", VFV, VF, tag_fu, wave0=True)
    a("s_barrier")
    self.stamp("flagU")
    a(f"s_lshl_b32 {sr(S_T0)}, {sr(S_WG)}, 13")
    a(f"s_lshl_b32 {sr(S_T1)}, {sr(S_WAVE)}, 11")
    a(f"s_add_u32 {sr(S_T0)}, {sr(S_T0)}, {sr(S_T1)}")
    a(f"s_add_u32 {sr(S_T0)}, {sr(S_T0)}, {WS_UT}")
    a(f"v_lshlrev_b32 v{VF}, 4, v{V_L}")
    a(f"buffer_load_dwordx4 {vr(UR,4)}, v{VF}, {sr(SRD_WS,4)}, {sr(S_T0)} offen sc1")
    tag_ur = a(f"buffer_load_dwordx4 {vr(UR+4,4)}, v{VF}, {sr(SRD_WS,4)}, {sr(S_T0)} offen offset:1024 sc1")
    a(f"s_lshl_b32 {sr(S_T0)}, {sr(S_TB)}, 8")
    a(f"s_lshl_b32 {sr(S_T1)}, {sr(S_WAVE)}, 6")
    a(f"s_add_u32 {sr(S_T0)}, {sr(S_T0)}, {sr(S_T1)}")
    a(f"s_add_u32 {sr(S_T0)}, {sr(S_T0)}, {WS_G}")
    a(f"v_lshlrev_b32 v31, 2, v{V_I}")
    a(f"buffer_load_dword v31, v31, {sr(SRD_WS,4)}, {sr(S_T0)} offen sc1")
    a(f"s_lshr_b32 {sr(S_T0)}, {sr(S_WAVE)}, 1")
    a(f"s_mul_i32 {sr(S_T0)}, {sr(S_T0)}, {UBS}")
    a(f"s_and_b32 {sr(S_T1)}, {sr(S_WAVE)}, 1")
    a(f"s_lshl_b32 {sr(S_T1)}, {sr(S_T1)}, 11")
    a(f"s_add_u32 {sr(S_T0)}, {sr(S_T0)}, {sr(S_T1)}")
    a(f"s_add_u32 {sr(S_T0)}, {sr(S_T0)}, {L_UB + 512}")
    a(f"v_add_u32 v{VF}, {sr(S_T0)}, v{VF}")
    for p in range(4):
        a(f"s_add_u32 {sr(S_T0)}, {sr(S_WAVE)}, {p+1}")
        a(f"s_and_b32 {sr(S_T0)}, {sr(S_T0)}, 3")
        a(f"s_lshl_b32 {sr(S_T1)}, {sr(S_TB)}, 2")
        a(f"s_add_u32 {sr(S_T0)}, {sr(S_T0)}, {sr(S_T1)}")
        a(f"s_lshl_b32 {sr(S_T0)}, {sr(S_T0)}, 3")
        a(f"s_lshl_b32 {sr(S_T1)}, {sr(S_WAVE)}, 1")
        a(f"s_add_u32 {sr(S_T0)}, {sr(S_T0)}, {sr(S_T1)}")
        a(f"s_mul_i32 {sr(S_T0)}, {sr(S_T0)}, 7168")
        a(f"s_add_u32 {sr(S_HB+p)}, {sr(S_T0)}, {WS_H}")
    a.wait_vm(tag_ur)
    a(f"ds_write_b128 v{VF}, {vr(UR,4)}")
    a(f"ds_write_b128 v{VF}, {vr(UR+4,4)} offset:1024")
    a("s_waitcnt lgkmcnt(0)")
    a("s_barrier")
    self.stamp("uTin")

    HB = 128
    VH = 30
    a(f"v_lshlrev_b32 v{VH}, 4, v{V_L}")
    self.ht = {}

    def H_reg(p, st):
        if p == 0:
            return HB + 4 * st
        if p == 1:
            return HB + 56 + 4 * st
        if p == 2:
            return 96 + 4 * st if st < 8 else HB + 4 * st
        return HB + 4 * st if st < 4 else HB + 56 + 4 * st

    def h_load(p, st):
        hb = H_reg(p, st)
        return [lambda: a(f"s_add_u32 {sr(S_L0)}, {sr(S_HB+p)}, {sr(S_SIG[st])}"),
                lambda: self.ht.__setitem__((p, st), a(
                    f"buffer_load_dwordx4 {vr(hb,4)}, v{VH}, {sr(SRD_WS,4)}, {sr(S_L0)} offen sc1"))]
    self.H_reg = H_reg
    self.h_load, self.HB, self.VH = h_load, HB, VH

    UBV = 240
    def ub_reg(rho, k):
        if rho & 1:
            return ar(224 + 4 * k, 4)
        return vr(self.UB_EVEN[k], 4)
    self.UB_EVEN = [4, 8, 12, 16, 20, 240, 244, 248]

    def conv_reads(rho):
        ta = TA[rho & 1]
        ops = []
        order = [0, 1, 2, 3, 4, 5, 6, 7]
        for k in order:
            off = 64 * ((7 - k) * 8 + (3 - rho))
            ops.append(lambda k=k, off=off: a(f"ds_read_b64 {vr(ta+4*k,2)}, v{VT} offset:{off}"))
            ops.append(lambda k=k, off=off: a(f"ds_read_b64 {vr(ta+4*k+2,2)}, v{VT} offset:{off+8}"))
            ops.append(lambda k=k: ctag.__setitem__((rho, k), a(f"ds_read_b128 {ub_reg(rho,k)}, v{VU} offset:{512*k + 64*(3-rho)}")))
        return ops

    ctag = {}
    hfill = Fill()
    for p in range(2):
        for st in range(14):
            hfill.add(h_load(p, st))
            hfill.q += [None] * 3
    VR = 26
    a(f"s_lshl_b32 {sr(S_T0)}, {sr(S_WAVE)}, 13")
    a(f"s_add_u32 {sr(S_T0)}, {sr(S_T0)}, {L_RED}")
    a(f"v_lshl_add_u32 v{VR}, v{V_I}, 2, v{V_G}")
    a(f"v_lshl_add_u32 v{VR}, v{VR}, 4, {sr(S_T0)}")
    for op in conv_reads(0):
        op()
    for rho in range(4):
        ta = TA[rho & 1]
        nxt = conv_reads(rho + 1) if rho < 3 else []
        n = 0
        for t in range(8):
            a.wait_lg(ctag[(rho, t)])
            for i in range(t + 1):
                c = "0" if (rho == 0 and i == 0) else vr(CA+4*t, 4)
                a(f"{MF} {vr(CA+4*t,4)}, {vr(ta+4*i,4)}, {ub_reg(rho, t-i)}, {c}")
                n += 1
                if nxt and n % 3 != 0:
                    nxt.pop(0)()
                if rho == 3 and t >= 3 and i == 2:
                    a(f"ds_write_b128 v{VR}, {vr(CA+4*(t-3),4)} offset:{1024*(t-3)}")
                hfill.step()
        assert not nxt
    for t in (5, 6, 7):
        a(f"ds_write_b128 v{VR}, {vr(CA+4*t,4)} offset:{1024*t}")
    hfill.drain()
    xfill = Fill()
    for st in range(8):
        xfill.q.append(lambda st=st: [op() for op in h_load(2, st)])
    self.stamp("conv")

    VR, YR = 24, 64
    a(f"s_lshl_b32 {sr(S_T0)}, {sr(S_WAVE)}, 11")
    a(f"s_add_u32 {sr(S_T0)}, {sr(S_T0)}, {L_RED}")
    a(f"v_lshl_add_u32 v{VR+1}, v{V_L}, 4, {sr(S_T0)}")
    a(f"s_lshl_b32 {sr(S_T4)}, {sr(S_WG)}, 13")
    a(f"s_lshl_b32 {sr(S_T1)}, {sr(S_WAVE)}, 11")
    a(f"s_add_u32 {sr(S_T4)}, {sr(S_T4)}, {sr(S_T1)}")
    a(f"s_add_u32 {sr(S_T4)}, {sr(S_T4)}, {WS_YT}")
    a(f"v_lshlrev_b32 v{VR+2}, 4, v{V_L}")
    xfill.step(3)
    a("s_waitcnt lgkmcnt(0)")
    a("s_barrier")
    for tt in range(2):
        for src in range(4):
            a(f"ds_read_b128 {vr(YR + 16*tt + 4*src,4)}, v{VR+1} offset:{8192*src + 1024*tt}")
    xfill.step(2)
    for tt in range(2):
        y = YR + 16 * tt
        a(f"s_waitcnt lgkmcnt({4*(1-tt)})")
        for r in range(4):
            a(f"v_add_f32 v{y+r}, v{y+r}, v{y+4+r}")
            a(f"v_add_f32 v{y+8+r}, v{y+8+r}, v{y+12+r}")
        for r in range(4):
            a(f"v_cvt_pk_bf16_f32 v{y+4+r}, v{y+r}, v{y+8+r}")
        self.tag_pubY = a(f"buffer_store_dwordx4 {vr(y+4,4)}, v{VR+2}, {sr(SRD_WS,4)}, {sr(S_T4)} offen offset:{1024*tt} sc1")
    xfill.drain()
    self.stamp("ystore")


def phase_c(self):
    a, o = self.a, self.o
    H_reg, ht, h_load = self.H_reg, self.ht, self.h_load
    ACC = 32
    EG, OM = 31, 11
    EY = 240
    TU, TD, TB, TX = 248, 250, 252, 28
    VE, VF, VFV, VRW = 4, 8, 9, 10
    ZR = 12
    tags = {}
    fill = Fill()
    a(f"s_lshl_b32 {sr(S_T0)}, {sr(S_TB)}, 6")
    a(f"s_lshl_b32 {sr(S_T1)}, {sr(S_WAVE)}, 4")
    a(f"s_add_u32 {sr(S_T0)}, {sr(S_T0)}, {sr(S_T1)}")
    a(f"v_add_u32 v{VE}, {sr(S_T0)}, v{V_I}")
    a(f"s_lshl_b32 {sr(S_T1)}, {sr(S_DB)}, 6")
    a(f"v_lshl_add_u32 v{VE+1}, v{V_G}, 2, {sr(S_T1)}")
    setup = [
        lambda: a(f"v_lshlrev_b32 v{VE+3}, 12, v{VE+1}"),
        lambda: a(f"v_lshl_add_u32 v{VE+3}, v{VE}, 2, v{VE+3}"),
        lambda: a(f"v_add_u32 v{VE+3}, {WS_YT}, v{VE+3}"),
        lambda: a(f"s_lshl_b32 {sr(S_T2)}, {sr(S_DB)}, 10"),
        lambda: a(f"s_add_u32 {sr(S_T2)}, {sr(S_T2)}, {WS_FLAGY}"),
        lambda: a(f"v_and_b32 v{VF}, 31, v{V_L}"),
        lambda: a(f"v_lshlrev_b32 v{VF}, 5, v{VF}"),
        lambda: a(f"v_add_u32 v{VF}, {sr(S_T2)}, v{VF}"),
        lambda: a(f"v_lshrrev_b32 v{TX}, 1, v{V_G}"),
        lambda: a(f"v_and_b32 v{TX+1}, 7, v{V_I}"),
        lambda: a(f"v_xor_b32 v{TX}, v{TX}, v{TX+1}"),
        lambda: a(f"v_lshlrev_b32 v{TX}, 4, v{TX}"),
        lambda: a(f"v_lshl_add_u32 v{TX}, v{V_I}, 7, v{TX}"),
        lambda: a(f"v_and_b32 v{TX+1}, 1, v{V_G}"),
        lambda: a(f"v_lshl_add_u32 v{TX}, v{TX+1}, 3, v{TX}"),
        lambda: a(f"s_lshl_b32 {sr(S_T2)}, {sr(S_WAVE)}, 11"),
        lambda: a(f"s_add_u32 {sr(S_T2)}, {sr(S_T2)}, {L_UE}"),
        lambda: a(f"v_add_u32 v{VE+2}, {sr(S_T2)}, v{TX}"),
        lambda: a(f"v_lshlrev_b32 v{VE+1}, 4, v{V_G}"),
        lambda: a(f"v_add_u32 v{VE+1}, {L_DB}, v{VE+1}"),
        lambda: a(f"v_sub_f32 v{OM}, 1.0, v{EG}"),
        lambda: a(f"v_cvt_pk_bf16_f32 v{OM}, v{OM}, v{OM}"),
        lambda: a(f"v_and_b32 v{OM}, 0xffff0000, v{OM}"),
    ]
    fill.q += setup

    def z0_ops():
        ops = []
        for t in range(4):
            ops.append(lambda t=t: a(f"v_xor_b32 v{TX}, {32*t}, v{VE+2}"))
            ops.append(lambda t=t: a(f"ds_read_b64 {vr(TU,2)}, v{TX}"))
            for h in range(2):
                ops.append(lambda t=t, h=h: a(f"ds_read_b64 {vr(TD,2)}, v{VE+1} offset:{64*t + 8*h}"))
                ops.append(lambda t=t, h=h: tags.__setitem__("z", a(f"ds_read_b64 {vr(TB,2)}, v{VE+1} offset:{256 + 64*t + 8*h}")))
                ops += [None, None]
                ops.append(lambda: a.wait_lg(tags["z"]))
                for e in range(2):
                    k = 4 * t + 2 * h + e
                    if e == 0:
                        ops.append(lambda h=h: a(f"v_lshlrev_b32 v{TX+1}, 16, v{TU+h}"))
                    else:
                        ops.append(lambda h=h: a(f"v_and_b32 v{TX+1}, 0xffff0000, v{TU+h}"))
                    ops.append(lambda e=e: a(f"v_mul_f32 v{TX+1}, v{TX+1}, v{TD+e}"))
                    ops.append(lambda e=e, k=k: a(f"v_mul_f32 v{ZR+k}, v{OM}, v{TB+e}"))
                    ops.append(lambda k=k: a(f"v_fma_f32 v{ZR+k}, v{EG}, v{TX+1}, v{ZR+k}"))
        return ops
    fill.q += z0_ops()

    def y_ops():
        ops = []
        for t in range(4):
            for h in range(2):
                ops.append(lambda t=t, h=h: (a(f"s_mov_b32 {sr(S_T2)}, {t*8*8192 + h*8192}"), tags.__setitem__("y", a(
                    f"buffer_load_dword v{EY+2*t+h}, v{VE+3}, {sr(SRD_WS,4)}, {sr(S_T2)} offen sc1"))))
        return ops

    red_w = Fill()
    after = {0: {st: [(3, st)] for st in range(4)}, 1: {st: [(3, st)] for st in range(4, 14)}, 2: {}, 3: {}}
    for st in range(8, 14):
        after[0][st] = [(2, st)]
    PR = [96 + 4 * k for k in range(8)] + [128 + 16 + 4 * k for k in range(4)]
    for p in range(4):
        acc = lambda t, p=p: ACC + (p * 4 + t) * 4
        if o.get("fine"):
            self.stamp(f"p{p}")
        if p == 1:
            a.wait_vm(self.tag_pubY)
            a("s_barrier")
            a(f"s_lshl_b32 {sr(S_T0)}, {sr(S_WG)}, 5")
            a(f"s_add_u32 {sr(S_T0)}, {sr(S_T0)}, {WS_FLAGY}")
            self.flag_store(S_T0, EY)
        if p == 2:
            fill.q.append(lambda: tags.__setitem__("fy", self.flag_load(VFV, VF)))
        if p == 3:
            assert not fill.pending() and not red_w.pending()
            self.flag_check("Y", VFV, VF, tags["fy"])
            a("s_waitcnt lgkmcnt(0)")
            a("s_barrier")
            a(f"s_mul_i32 {sr(S_T0)}, {sr(S_WAVE)}, {3*4096}")
            a(f"s_add_u32 {sr(S_T0)}, {sr(S_T0)}, {L_RED2}")
            a(f"v_lshl_add_u32 v{VRW}, v{V_L}, 4, {sr(S_T0)}")
            fill.q += y_ops()
            for q in range(3):
                for t in range(4):
                    fill.q.append(lambda q=q, t=t: a(f"ds_read_b128 {vr(PR[4*q+t],4)}, v{VRW} offset:{4096*q + 1024*t}"))
        for st in range(14):
            if o.get("fine") and st in (0, 7):
                self.stamp(f"p{p}s{st}")
            a.wait_vm(ht[(p, st)])
            for t in range(4):
                c = "0" if st == 0 else vr(acc(t), 4)
                a(f"{MF} {vr(acc(t),4)}, {ar((st*4+t)*4,4)}, {vr(H_reg(p, st),4)}, {c}")
                if t == 3 and st in after[p]:
                    for (pp, ss) in after[p][st]:
                        for op in h_load(pp, ss):
                            op()
                elif red_w.pending() and t == 1 and st >= 1:
                    red_w.step()
                else:
                    fill.step(2 if p == 2 else 1)
        if p < 3:
            def addr(p=p):
                a(f"s_add_u32 {sr(S_T0)}, {sr(S_WAVE)}, {p+1}")
                a(f"s_and_b32 {sr(S_T0)}, {sr(S_T0)}, 3")
                a(f"s_mul_i32 {sr(S_T0)}, {sr(S_T0)}, {3*4096}")
                a(f"s_add_u32 {sr(S_T0)}, {sr(S_T0)}, {L_RED2 + p*4096}")
                a(f"v_lshl_add_u32 v{VRW}, v{V_L}, 4, {sr(S_T0)}")
            if p < 2:
                red_w.q.append(addr)
                for t in range(4):
                    red_w.q.append(lambda t=t, r=acc(t): a(f"ds_write_b128 v{VRW}, {vr(r,4)} offset:{1024*t}"))
            else:
                addr()
                for t in range(4):
                    a(f"ds_write_b128 v{VRW}, {vr(acc(t),4)} offset:{1024*t}")
    fill.drain()
    self.stamp("gemm2")
    own = ACC + 48
    a("s_waitcnt lgkmcnt(0)")
    for q in range(3):
        for t in range(4):
            for k in (0, 2):
                a(f"v_pk_add_f32 {vr(own+4*t+k,2)}, {vr(own+4*t+k,2)}, {vr(PR[4*q+t]+k,2)}")
    a(f"v_and_b32 v{VF}, 1, v{V_G}")
    a(f"v_lshlrev_b32 v{VF}, 5, v{VF}")
    a(f"v_lshrrev_b32 v{VF+1}, 1, v{V_G}")
    a(f"v_lshl_add_u32 v{VF}, v{VF+1}, 4, v{VF}")
    a(f"v_lshl_add_u32 v{VF}, v{VE}, 10, v{VF}")
    a(f"s_lshl_b32 {sr(S_T0)}, {sr(S_DB)}, 7")
    for k in range(16):
        a(f"v_fma_f32 v{own+k}, v{OM}, v{own+k}, v{ZR+k}")
    a.wait_vm(tags["y"])
    res = 96
    for k in range(8):
        a(f"v_lshlrev_b32 v{TX}, 16, v{EY+k}")
        a(f"v_and_b32 v{TX+1}, 0xffff0000, v{EY+k}")
        a(f"v_fma_f32 v{own+2*k}, v{EG}, v{TX}, v{own+2*k}")
        a(f"v_fma_f32 v{own+2*k+1}, v{EG}, v{TX+1}, v{own+2*k+1}")
        a(f"v_cvt_pk_bf16_f32 v{res+k}, v{own+2*k}, v{own+2*k+1}")
    for P in range(2):
        r0 = res + 4 * P
        a(f"v_permlane16_swap_b32 v{r0}, v{r0+2}")
        a(f"v_permlane16_swap_b32 v{r0+1}, v{r0+3}")
    for P in range(2):
        r0 = res + 4 * P
        a(f"buffer_store_dwordx4 {vr(r0,4)}, v{VF}, {sr(SRD_OUT,4)}, {sr(S_T0)} offen offset:{64*P}")
```

```python
import sys, struct, math, json, argparse
from asmlib import Asm, vr, ar, sr

KNAME = "gated_mix__ssm_conv_s4__mixer_channel_mlp__prompt_kernel"
LOG2E = math.log2(math.e)
SPIN_MAX = 400000

WS_EPOCH = 0
WS_FLAGA = 4096
WS_FLAGY = 16384
WS_FLAGW = 24576
WS_G = 32768
WS_UT = 65536
WS_YT = WS_UT + (2 << 20)
WS_H = WS_YT + (2 << 20)
WS_W2T = WS_H + 128 * 8 * 7 * 1024
WS_END = WS_W2T + 1792 * 1024
WS_DUMP = WS_END + (1 << 20)

LDS_TOTAL = 163840
L_GATEW = 131072
L_ONES = L_GATEW + 1024 + 64
L_ZEROS = L_ONES + 1024 + 64
L_UTS = L_ZEROS + 1024 + 128
L_CS = L_UTS + 8192
L_B1 = L_CS + 512
L_W2U = L_B1 + 512
TROW = 544
L_HI = 0
L_LO = 2 * 32 * TROW
L_TAB = 4 * 32 * TROW
TAB_ZERO = 1000
KCS = 4160
L_KC = L_TAB + 4096
L_UB = L_KC + 8 * KCS
UBS = 4608
L_RED = L_UB + 2 * UBS
L_RED2 = 0
L_DB = 152064
L_UE = L_DB + 512
assert L_UE + 8192 <= LDS_TOTAL and L_W2U + 8192 <= L_DB and L_RED + 4 * 8192 <= L_DB
assert L_RED + 4 * 8192 <= LDS_TOTAL - 64 and L_W2U + 8192 <= LDS_TOTAL - 64

S_WG, S_T0, S_WAVE, S_RB, S_CB, S_T3, S_TB, S_DB, S_T1, S_T2 = 2, 3, 4, 5, 6, 7, 8, 9, 10, 11
SRD_U, SRD_W1, SRD_W2, SRD_WS, SRD_OUT = 12, 16, 20, 24, 28
P_U, P_ARE, P_AIM, P_BRE, P_BIM, P_CRE, P_CIM, P_LOGDT = 32, 34, 36, 38, 40, 42, 44, 46
P_DSKIP, P_W1, P_B1, P_W2, P_B2, P_GATE, P_OUT, P_DBG, P_WS = 48, 52, 54, 56, 58, 60, 62, 64, 66
S_X0, S_X1, S_WOFF, S_M0, S_NONCE, S_IDX = 68, 69, 70, 71, 72, 73
S_EX, S_C2, S_M1, S_M2, S_M3, S_PC = 74, 76, 78, 80, 82, 84
S_T4, S_T5, S_T6, S_T7 = 86, 87, 88, 89
S_TS = 90
S_SPIN, S_ROT, S_XS, S_WS2, S_MW, S_W2B = 92, 93, 94, 95, 96, 97
S_HB = 32
S_L0 = 50
S_L1 = 51
S_SIG = [36, 37, 38, 39, 40, 41, 42, 43, 44, 45, 46, 47, 0, 1]

V_L, V_I, V_G = 1, 2, 3
V_TID = 0
BF16_ONE2 = 0x3F803F80
MF = "v_mfma_f32_16x16x32_bf16"


def f2u(x):
    return struct.unpack("<I", struct.pack("<f", x))[0]


def cmul(a, dst, p, w, tmp):
    a(f"v_pk_mul_f32 {vr(tmp,2)}, {vr(p,2)}, {vr(w,2)} op_sel:[0,0] op_sel_hi:[1,0]")
    a(f"v_pk_fma_f32 {vr(dst,2)}, {vr(p,2)}, {vr(w,2)}, {vr(tmp,2)} op_sel:[1,1,0] op_sel_hi:[0,1,1] neg_lo:[0,1,0]")


class Fill:
    def __init__(self):
        self.q = []

    def add(self, ops, gap=0):
        for op in ops:
            self.q.append(op)
            self.q += [None] * gap

    def step(self, n=1):
        for _ in range(n):
            if self.q:
                op = self.q.pop(0)
                if op is not None:
                    op()

    def drain(self):
        while self.q:
            self.step()

    def pending(self):
        return [x for x in self.q if x is not None]


class Paced:
    def __init__(self, asm, fill, period):
        self.asm, self.fill, self.period, self.n, self.busy = asm, fill, period, 0, False

    def __call__(self, text, count=True):
        tag = self.asm(text, count)
        if self.busy:
            return tag
        self.n += 1
        if self.n >= self.period and not text.startswith(("s_waitcnt", "s_barrier", "s_mov_b64 exec", "s_add_u32 m0", "v_cmp", "s_cmp")):
            self.n = 0
            self.busy = True
            self.fill.step()
            self.busy = False
        return tag

    def __getattr__(self, name):
        return getattr(self.asm, name)


class Gen:
    def __init__(self, opts):
        self.o = opts
        self.a = Asm()
        self.stamp_n = 0
        self.uid = 0

    def stamp(self, name):
        if not self.o.get("stamps"):
            return
        a = self.a
        n = self.stamp_n
        self.stamp_n += 1
        self.o.setdefault("stamp_names", []).append(name)
        pair = (98, 100)[n & 1]
        if n >= 2:
            a(f"v_writelane_b32 v255, s{pair}, {n-2}")
        a(f"{'s_memrealtime' if self.o.get('rt') else 's_memtime'} s[{pair}:{pair+1}]")

    def stamp_flush(self):
        if not self.o.get("stamps"):
            return
        a = self.a
        a("s_waitcnt lgkmcnt(0)")
        n = self.stamp_n
        for k in (n - 2, n - 1):
            a(f"v_writelane_b32 v255, s{(98, 100)[k & 1]}, {k}")
        a(f"s_lshl_b32 {sr(S_T0)}, {sr(S_WG)}, 2")
        a(f"s_add_u32 {sr(S_T0)}, {sr(S_T0)}, {sr(S_WAVE)}")
        a(f"s_lshl_b32 {sr(S_T0)}, {sr(S_T0)}, 8")
        a(f"s_add_u32 {sr(S_T0)}, {sr(S_T0)}, {WS_END}")
        a(f"v_lshlrev_b32 v254, 2, v{V_L}")
        a(f"buffer_store_dword v255, v254, {sr(SRD_WS,4)}, {sr(S_T0)} offen")

    def flag_store(self, off_sreg, t0):
        a = self.a
        a(f"v_mov_b32 v{t0}, {sr(off_sreg)}")
        a(f"v_mov_b32 v{t0+1}, {sr(S_NONCE)}")
        a(f"s_mov_b64 {sr(S_EX,2)}, exec")
        a("s_mov_b64 exec, 1")
        tag = a(f"buffer_store_dword v{t0+1}, v{t0}, {sr(SRD_WS,4)}, 0 offen sc1")
        a(f"s_mov_b64 exec, {sr(S_EX,2)}")
        return tag

    def flag_load(self, vdst, vaddr):
        return self.a(f"buffer_load_dword v{vdst}, v{vaddr}, {sr(SRD_WS,4)}, 0 offen sc1")

    def flag_check(self, name, vdst, vaddr, tag, wave0=False):
        a = self.a
        if wave0:
            a(f"s_cmp_lg_u32 {sr(S_WAVE)}, 0")
            a(f"s_cbranch_scc1 L_ok_{name}")
        a.wait_vm(tag)
        a(f"v_cmp_ne_u32 vcc, {sr(S_NONCE)}, v{vdst}")
        a("s_nop 0")
        a("s_cmp_eq_u64 vcc, 0")
        a(f"s_cbranch_scc1 L_ok_{name}")
        a(f"s_mov_b32 {sr(S_SPIN)}, {SPIN_MAX}")
        a.label(f"L_poll_{name}")
        a("s_sleep 2")
        a(f"buffer_load_dword v{vdst}, v{vaddr}, {sr(SRD_WS,4)}, 0 offen sc1", count=False)
        a("s_waitcnt vmcnt(0)")
        a(f"v_cmp_ne_u32 vcc, {sr(S_NONCE)}, v{vdst}")
        a(f"s_sub_u32 {sr(S_SPIN)}, {sr(S_SPIN)}, 1")
        a(f"s_cmp_eq_u32 {sr(S_SPIN)}, 0")
        a(f"s_cbranch_scc1 L_ok_{name}")
        a("s_cmp_lg_u64 vcc, 0")
        a(f"s_cbranch_scc1 L_poll_{name}")
        a.label(f"L_ok_{name}")

    def prologue(self):
        a = self.a
        a(f"s_cmp_ge_u32 {sr(S_WG)}, 256")
        a("s_cbranch_scc1 L_end")
        if self.o.get("clk"):
            a("s_memtime s[98:99]")
            a("s_memrealtime s[100:101]")
        a(f"s_load_dwordx16 {sr(32,16)}, s[0:1], 0")
        a(f"s_load_dwordx2 {sr(P_DSKIP,2)}, s[0:1], 64")
        a(f"s_load_dwordx4 {sr(52,4)}, s[0:1], 80")
        a(f"s_load_dwordx4 {sr(56,4)}, s[0:1], 96")
        a(f"s_load_dwordx4 {sr(60,4)}, s[0:1], 112")
        a(f"s_load_dwordx4 {sr(64,4)}, s[0:1], 128")
        if self.o.get("stamps"):
            a("v_mov_b32 v255, 0")
            self.stamp("entry")
        a(f"v_lshrrev_b32 v4, 6, v{V_TID}")
        a(f"v_and_b32 v{V_L}, 63, v{V_TID}")
        a(f"v_readfirstlane_b32 {sr(S_WAVE)}, v4")
        a(f"v_and_b32 v{V_I}, 15, v{V_L}")
        a(f"v_lshrrev_b32 v{V_G}, 4, v{V_L}")
        a(f"s_and_b32 {sr(S_T0)}, {sr(S_WG)}, 7")
        a(f"s_lshr_b32 {sr(S_IDX)}, {sr(S_WG)}, 3")
        a(f"s_and_b32 {sr(S_T1)}, {sr(S_IDX)}, 3")
        a(f"s_lshr_b32 {sr(S_DB)}, {sr(S_IDX)}, 2")
        a(f"s_lshr_b32 {sr(S_T2)}, {sr(S_T0)}, 1")
        a(f"s_lshl_b32 {sr(S_T2)}, {sr(S_T2)}, 2")
        a(f"s_add_u32 {sr(S_RB)}, {sr(S_T2)}, {sr(S_T1)}")
        a(f"s_and_b32 {sr(S_T2)}, {sr(S_T0)}, 1")
        a(f"s_lshl_b32 {sr(S_T2)}, {sr(S_T2)}, 3")
        a(f"s_add_u32 {sr(S_CB)}, {sr(S_T2)}, {sr(S_DB)}")
        a(f"s_lshl_b32 {sr(S_T2)}, {sr(S_T0)}, 2")
        a(f"s_add_u32 {sr(S_TB)}, {sr(S_T2)}, {sr(S_T1)}")

    def build_srds(self):
        a = self.a
        wsz = WS_DUMP + (16 << 20) if self.o.get("dump") else WS_END + (256 * 4 * 256 if self.o.get("stamps") else 0)
        for srd, p, size in ((SRD_U, P_U, 2048 * 1024), (SRD_W1, P_W1, 512 * 3584), (SRD_W2, P_W2, 1792 * 1024),
                             (SRD_WS, P_WS, wsz), (SRD_OUT, P_OUT, 2048 * 1024)):
            a(f"s_mov_b32 {sr(srd)}, {sr(p)}")
            a(f"s_and_b32 {sr(srd+1)}, {sr(p+1)}, 0xffff")
            a(f"s_mov_b32 {sr(srd+2)}, {size}")
            a(f"s_mov_b32 {sr(srd+3)}, 0x20000")

    def k_tables(self, KP, R, VTA, fill=None, period=12):
        cnt = [0]

        def a(text):
            self.a(text)
            cnt[0] += 1
            if fill is not None and cnt[0] % period == 0:
                fill.step()
        DT, A2, BR = R, R + 1, R + 2
        W, W1, W2, W4, W8, VV = R + 4, R + 6, R + 8, R + 10, R + 12, R + 14
        P, Q, TMP, PK, QQ, QB = R + 16, R + 18, R + 20, R + 22, R + 26, R + 28
        for k in range(7):
            a(f"v_lshlrev_b32 v{KP+k}, 16, v{KP+k}")
        ARE, AIM, BRE, BIM, CRE, CIM, LDT = (KP + k for k in range(7))
        a(f"v_mul_f32 v{DT}, {f2u(LOG2E):#x}, v{LDT}")
        a(f"v_exp_f32 v{DT}, v{DT}")
        a(f"v_cvt_pk_bf16_f32 v{DT}, v{DT}, v{DT}")
        a(f"v_and_b32 v{DT}, 0xffff0000, v{DT}")
        a(f"v_mul_f32 v{A2}, v{DT}, v{ARE}")
        a(f"v_mul_f32 v{BR}, v{DT}, v{AIM}")
        a(f"v_mul_f32 v{BRE}, v{DT}, v{BRE}")
        a(f"v_mul_f32 v{BIM}, v{DT}, v{BIM}")
        a(f"v_mul_f32 v{A2}, {f2u(LOG2E):#x}, v{A2}")
        a(f"v_mul_f32 v{BR}, {f2u(1.0/(2*math.pi)):#x}, v{BR}")
        a(f"v_mul_f32 v{W}, v{CRE}, v{BRE}")
        a(f"v_mul_f32 v{W+1}, v{CRE}, v{BIM}")
        a(f"v_fma_f32 v{W}, -v{CIM}, v{BIM}, v{W}")
        a(f"v_fma_f32 v{W+1}, v{CIM}, v{BRE}, v{W+1}")
        for n, (dst, t) in enumerate(((W1, 1.0), (W8, 8.0), (VV, 256.0))):
            e, f = P + 2 * n, P + 2 * n + 1
            a(f"v_mul_f32 v{e}, {f2u(t):#x}, v{A2}")
            a(f"v_mul_f32 v{f}, {f2u(t):#x}, v{BR}")
        for n in range(3):
            a(f"v_exp_f32 v{P+2*n}, v{P+2*n}")
            a(f"v_fract_f32 v{P+2*n+1}, v{P+2*n+1}")
        for n, dst in enumerate((W1, W8, VV)):
            a(f"v_cos_f32 v{dst}, v{P+2*n+1}")
            a(f"v_sin_f32 v{dst+1}, v{P+2*n+1}")
        for n, dst in enumerate((W1, W8, VV)):
            a(f"v_mul_f32 v{dst}, v{P+2*n}, v{dst}")
            a(f"v_mul_f32 v{dst+1}, v{P+2*n}, v{dst+1}")
        cmul(a, W2, W1, W1, TMP)
        cmul(a, W4, W2, W2, TMP)
        n = [0]

        def put(src, slot, hi):
            pk = PK + (n[0] & 3)
            n[0] += 1
            a(f"v_cvt_pk_bf16_f32 v{pk}, v{src}, {'-' if hi else ''}v{src+1}")
            a(f"ds_write_b32 v{VTA}, v{pk} offset:{(L_HI + slot*TROW) if slot < 21 else (L_LO + (slot-21)*TROW)}")

        put(W, 0, True)
        cur, oth = W, P
        for i in range(1, 8):
            cmul(a, oth, cur, W1, TMP); put(oth, i, True)
            cur, oth = oth, (Q if oth == P else P)
        cmul(a, QQ, W, VV, TMP); put(QQ, 8, True)
        cmul(a, P, QQ, W2, TMP); put(P, 9, True)
        cmul(a, Q, P, W2, TMP); put(Q, 10, True)
        cmul(a, P, Q, W2, TMP); put(P, 11, True)
        cmul(a, QB, QQ, VV, TMP); put(QB, 12, True)
        cmul(a, P, QB, W4, TMP); put(P, 13, True)
        cmul(a, QQ, QB, VV, TMP); put(QQ, 14, True)
        cmul(a, P, QQ, W4, TMP); put(P, 15, True)
        cur, oth = QQ, QB
        for row in range(16, 21):
            cmul(a, oth, cur, VV, TMP); put(oth, row, True)
            cur, oth = oth, cur
        a(f"v_mov_b32 v{P}, 1.0")
        a(f"v_mov_b32 v{P+1}, 0")
        put(P, 21, False)
        put(W8, 22, False)
        cur, oth = W8, P
        for j in range(2, 32):
            cmul(a, oth, cur, W8, TMP); put(oth, 21 + j, False)
            cur, oth = oth, (Q if oth == P else P)

    def phase_a(self):
        a, o = self.a, self.o
        VA, VAC, VGT, VXR = 4, 11, 13, 14
        KP = 16
        VNON = 24
        VFW, VFA, VW2, VB1O, VZERO = 26, 27, 28, 29, 30
        ACC, ACCS, ACCG, ACCC = 32, 88, 96, 104
        AF, AC, GF, ONEB, XF = 112, 140, 148, 152, 156
        VXD, VWD, VUS = 172, 176, 178
        VB1, VGC = 182, 183
        VGO, VPA, VPD = 250, 251, 252
        VDK, VB2, VUE = 248, 249, 23
        T = 184
        acc = lambda t, tt: ACC + (t * 2 + tt) * 4
        X = lambda s, tt: XF + ((s & 1) * 2 + tt) * 4

        VKO, VKO1 = 253, 31

        def srd(reg, p, size):
            a(f"s_mov_b32 {sr(reg)}, {sr(p)}")
            a(f"s_and_b32 {sr(reg+1)}, {sr(p+1)}, 0xffff")
            a(f"s_mov_b32 {sr(reg+2)}, {size}")
            a(f"s_mov_b32 {sr(reg+3)}, 0x20000")

        a(f"s_getpc_b64 {sr(S_PC,2)}")
        a.label("L_pc")
        a(f"s_lshl_b32 {sr(S_T0)}, {sr(S_IDX)}, 2")
        a(f"s_add_u32 {sr(S_T0)}, {sr(S_T0)}, {sr(S_WAVE)}")
        a(f"s_mul_i32 {sr(S_T0)}, {sr(S_T0)}, PF_LINES")
        a(f"v_min_u32 v{VPA}, PF_LINES-1, v{V_L}")
        a(f"v_add_lshl_u32 v{VPA}, v{VPA}, {sr(S_T0)}, 6")
        a(f"v_min_u32 v{VPA}, L_end-L_pc, v{VPA}")
        a(f"global_load_dword v{VPD}, v{VPA}, {sr(S_PC,2)}")
        a(f"v_and_b32 v{T+1}, 7, v{V_L}")
        a(f"v_xor_b32 v{T+1}, v{T+1}, v{V_G}")
        a(f"v_lshrrev_b32 v{T+2}, 3, v{V_L}")
        a(f"v_lshlrev_b32 v{T+2}, 10, v{T+2}")
        a(f"v_lshl_add_u32 v{VXD}, v{T+1}, 4, v{T+2}")
        a(f"v_xor_b32 v{T}, 64, v{VXD}")
        a(f"v_add_u32 v{VXD+1}, {8192-1024}, v{T}")
        a(f"v_add_u32 v{VXD+2}, {2*(8192-1024)}, v{VXD}")
        a(f"v_add_u32 v{VXD+3}, {3*(8192-1024)}, v{T}")
        a(f"s_and_b32 {sr(S_T0)}, {sr(S_WAVE)}, 1")
        a(f"s_lshl_b32 {sr(S_T0)}, {sr(S_T0)}, 2")
        a(f"v_or_b32 v{T}, {sr(S_T0)}, v{V_G}")
        a(f"v_lshrrev_b32 v{T+1}, 1, v{V_I}")
        a(f"v_xor_b32 v{T+1}, v{T+1}, v{T}")
        a(f"v_min_u32 v{T+1}, 6, v{T+1}")
        a(f"v_lshlrev_b32 v{T+1}, 5, v{T+1}")
        a(f"v_and_b32 v{T+2}, 1, v{V_I}")
        a(f"v_lshl_add_u32 v{T+1}, v{T+2}, 4, v{T+1}")
        a(f"v_mul_u32_u24 v{VWD}, 3584, v{V_G}")
        a(f"v_add_u32 v{VWD}, v{VWD}, v{T+1}")
        a(f"v_add_u32 v{VWD+1}, {4*3584-1024}, v{VWD}")
        a(f"v_lshlrev_b32 v{VGO}, 4, v{V_L}")
        a(f"s_lshl_b32 {sr(S_X0)}, {sr(S_RB)}, 2")
        a(f"s_add_u32 {sr(S_X0)}, {sr(S_X0)}, {sr(S_WAVE)}")
        a(f"s_lshl_b32 {sr(S_X0)}, {sr(S_X0)}, 15")
        a(f"s_mul_i32 {sr(S_WOFF)}, {sr(S_WAVE)}, {8*3584}")
        a(f"s_mul_i32 {sr(S_T0)}, {sr(S_CB)}, 224")
        a(f"s_add_u32 {sr(S_WOFF)}, {sr(S_WOFF)}, {sr(S_T0)}")
        a(f"s_lshl_b32 {sr(S_M0)}, {sr(S_WAVE)}, 12")
        a(f"s_lshl_b32 {sr(S_MW)}, {sr(S_WAVE)}, 11")
        a(f"s_add_u32 {sr(S_MW)}, {sr(S_MW)}, 0x10000")
        if o.get("rot", True):
            a(f"s_add_u32 {sr(S_ROT)}, {sr(S_RB)}, {sr(S_CB)}")
        else:
            a(f"s_mov_b32 {sr(S_ROT)}, 0")
        a("s_waitcnt lgkmcnt(0)")
        srd(SRD_U, P_U, 2048 * 1024)
        srd(SRD_W1, P_W1, 512 * 3584)
        self.stamp("start")

        def late_setup_scalar():
            a(f"s_lshr_b32 {sr(S_T0)}, {sr(S_WAVE)}, 1")
            a(f"s_lshl_b32 {sr(S_T1)}, {sr(S_WG)}, 1")
            a(f"s_add_u32 {sr(S_T1)}, {sr(S_T1)}, {sr(S_T0)}")
            a(f"s_and_b32 {sr(S_T0)}, {sr(S_WAVE)}, 1")
            a(f"s_lshl_b32 {sr(S_T0)}, {sr(S_T0)}, 6")
            a(f"s_lshl_b32 {sr(S_T2)}, {sr(S_T1)}, 7")
            a(f"s_add_u32 {sr(S_T2)}, {sr(S_T2)}, {sr(S_T0)}")
            a(f"v_add_lshl_u32 v{VKO}, v{V_L}, {sr(S_T2)}, 1")
            a(f"s_lshl_b32 {sr(S_T1)}, {sr(S_T1)}, 1")
            a(f"v_mov_b32 v{VKO1}, {sr(S_T1)}")
            a(f"v_and_b32 v{T+3}, 127, v{V_TID}")
            a(f"v_min_u32 v{T+3}, 111, v{T+3}")
            a(f"s_mul_i32 {sr(S_T0)}, {sr(S_CB)}, 112")
            a(f"v_add_lshl_u32 v{VB1O}, v{T+3}, {sr(S_T0)}, 1")

            wsz = WS_DUMP + (16 << 20) if o.get("dump") else WS_END + (256 * 4 * 256 if o.get("stamps") else 0)
            srd(SRD_W2, P_W2, 1792 * 1024)
            srd(SRD_WS, P_WS, wsz)
            srd(SRD_OUT, P_OUT, 2048 * 1024)
            a(f"v_lshrrev_b32 v{T}, 2, v{V_L}")
            a(f"v_lshlrev_b32 v{T}, 10, v{T}")
            a(f"v_and_b32 v{T+1}, 3, v{V_L}")
            a(f"v_lshl_add_u32 v{VUS}, v{T+1}, 4, v{T}")

        def late_setup_w2u():
            U, UD, UR = S_T4, S_T5, S_T6
            a(f"s_lshl_b32 {sr(U)}, {sr(S_WG)}, 2")
            a(f"s_add_u32 {sr(U)}, {sr(U)}, {sr(S_WAVE)}")
            a(f"s_min_u32 {sr(U)}, {sr(U)}, 895")
            a(f"s_mul_i32 {sr(UD)}, {sr(U)}, 9363")
            a(f"s_lshr_b32 {sr(UD)}, {sr(UD)}, 18")
            a(f"s_mul_i32 {sr(S_T0)}, {sr(UD)}, 28")
            a(f"s_sub_u32 {sr(UR)}, {sr(U)}, {sr(S_T0)}")
            a(f"s_lshr_b32 {sr(UR)}, {sr(UR)}, 1")
            a(f"s_cmp_ge_u32 {sr(UR)}, 7")
            a(f"s_cselect_b32 {sr(S_T0)}, 1, 0")
            a(f"s_mul_i32 {sr(S_T1)}, {sr(S_T0)}, 7")
            a(f"s_sub_u32 {sr(S_T1)}, {sr(UR)}, {sr(S_T1)}")
            a(f"s_mul_i32 {sr(S_T0)}, {sr(S_T0)}, 224")
            a(f"s_lshl_b32 {sr(S_T2)}, {sr(S_T1)}, 5")
            a(f"s_cmp_ge_u32 {sr(S_T1)}, 3")
            a(f"s_cselect_b32 {sr(S_T3)}, 16, 0")
            a(f"s_add_u32 {sr(S_T2)}, {sr(S_T2)}, {sr(S_T3)}")
            a(f"s_add_u32 {sr(S_T3)}, {sr(S_T2)}, 16")
            a(f"s_cmp_eq_u32 {sr(S_T1)}, 6")
            a(f"s_cselect_b32 {sr(S_T2)}, 96, {sr(S_T2)}")
            a(f"s_cselect_b32 {sr(S_T3)}, 208, {sr(S_T3)}")
            a(f"s_add_u32 {sr(S_T2)}, {sr(S_T2)}, {sr(S_T0)}")
            a(f"s_add_u32 {sr(S_T3)}, {sr(S_T3)}, {sr(S_T0)}")
            a(f"s_and_b32 {sr(S_T0)}, {sr(UD)}, 3")
            a(f"s_mul_i32 {sr(S_T0)}, {sr(S_T0)}, 448")
            a(f"s_add_u32 {sr(S_T2)}, {sr(S_T2)}, {sr(S_T0)}")
            a(f"s_add_u32 {sr(S_T3)}, {sr(S_T3)}, {sr(S_T0)}")
            a(f"s_lshl_b32 {sr(S_T2)}, {sr(S_T2)}, 10")
            a(f"s_lshl_b32 {sr(S_T3)}, {sr(S_T3)}, 10")
            a(f"s_lshr_b32 {sr(S_T0)}, {sr(UD)}, 2")
            a(f"s_lshl_b32 {sr(S_T0)}, {sr(S_T0)}, 7")
            a(f"s_and_b32 {sr(S_T1)}, {sr(U)}, 1")
            a(f"s_lshl_b32 {sr(S_T1)}, {sr(S_T1)}, 6")
            a(f"s_add_u32 {sr(S_T0)}, {sr(S_T0)}, {sr(S_T1)}")
            a(f"s_add_u32 {sr(S_L0)}, {sr(S_T2)}, {sr(S_T0)}")
            a(f"s_add_u32 {sr(S_L1)}, {sr(S_T3)}, {sr(S_T0)}")
            a(f"s_sub_u32 {sr(S_L1)}, {sr(S_L1)}, 1024")
            a(f"s_lshl_b32 {sr(S_T7)}, {sr(U)}, 11")
            a(f"s_add_u32 {sr(S_T7)}, {sr(S_T7)}, {WS_W2T}")
            a(f"s_lshl_b32 {sr(S_T0)}, {sr(S_DB)}, 2")
            a(f"s_add_u32 {sr(S_T0)}, {sr(S_T0)}, {sr(S_WAVE)}")
            a(f"s_mul_i32 {sr(S_W2B)}, {sr(S_T0)}, {56*1024}")
            a(f"s_add_u32 {sr(S_W2B)}, {sr(S_W2B)}, {WS_W2T}")
            a(f"s_mul_i32 {sr(S_T0)}, {sr(S_T0)}, {7*32}")
            a(f"s_add_u32 {sr(S_T0)}, {sr(S_T0)}, {WS_FLAGW}")
            a(f"v_min_u32 v{VFA}, 6, v{V_L}")
            a(f"v_lshl_add_u32 v{VFA}, v{VFA}, 5, {sr(S_T0)}")
            a(f"v_lshlrev_b32 v{VW2}, 4, v{V_L}")

        xtag, wtag = {}, {}

        def x_ops(S):
            halves = []
            for h in range(2):
                ops = []
                if h == 0:
                    ops.append(lambda: a(f"s_add_u32 {sr(S_XS)}, {sr(S_ROT)}, {S}"))
                    ops.append(lambda: a(f"s_and_b32 {sr(S_XS)}, {sr(S_XS)}, 7"))
                    ops.append(lambda: a(f"s_lshl_b32 {sr(S_XS)}, {sr(S_XS)}, 7"))
                    ops.append(lambda: a(f"s_add_u32 {sr(S_XS)}, {sr(S_XS)}, {sr(S_X0)}"))
                ops.append(lambda: a(f"s_add_u32 m0, {sr(S_M0)}, {(S % 4) * 16384}"))
                for q in (2 * h, 2 * h + 1):
                    def ld(q=q):
                        xtag[S] = a(f"buffer_load_dwordx4 v{VXD+q}, {sr(SRD_U,4)}, {sr(S_XS)} offen offset:{q*1024} lds")
                    ops.append(ld)
                halves.append(ops)
            return halves

        def w_ops(s):
            ops = []
            if (s & 1) == 0:
                ops.append(lambda: a(f"s_add_u32 {sr(S_WS2)}, {sr(S_ROT)}, {s//2}"))
                ops.append(lambda: a(f"s_and_b32 {sr(S_WS2)}, {sr(S_WS2)}, 7"))
                ops.append(lambda: a(f"s_mul_i32 {sr(S_WS2)}, {sr(S_WS2)}, {64*3584}"))
                ops.append(lambda: a(f"s_add_u32 {sr(S_WS2)}, {sr(S_WS2)}, {sr(S_WOFF)}"))
            else:
                ops.append(lambda: a(f"s_add_u32 {sr(S_WS2)}, {sr(S_WS2)}, {32*3584}"))
            ops.append(lambda: a(f"s_add_u32 m0, {sr(S_MW)}, {(s % 8) * 8192}"))
            for q in range(2):
                def ld(q=q):
                    wtag[s] = a(f"buffer_load_dwordx4 v{VWD+q}, {sr(SRD_W1,4)}, {sr(S_WS2)} offen offset:{q*1024} lds")
                ops.append(ld)
            return [ops]

        def flat(groups):
            return [op for g in groups for op in g]

        def paced(groups):
            out = []
            for g in groups:
                pre, l0, l1 = g[:-2], g[-2], g[-1]
                blk = pre + [l0]
                blk += [None] * (9 - len(blk)) + [l1]
                out += blk
            return out

        def run(groups):
            for op in flat(groups):
                op()

        run(x_ops(0)); run(w_ops(0))
        a(f"s_mov_b32 m0, {L_GATEW}")
        tag_gate = a(f"global_load_lds_dwordx4 v{VGO}, {sr(P_GATE,2)}")
        run(w_ops(1))
        late_setup_scalar()
        a(f"v_mov_b32 v{VZERO}, 0")
        a(f"buffer_load_dword v{VNON}, v{VZERO}, {sr(SRD_WS,4)}, 0 offen sc1")
        for k, p in enumerate((P_ARE, P_AIM, P_BRE, P_BIM, P_CRE, P_CIM)):
            a(f"global_load_ushort v{KP+k}, v{VKO}, {sr(p,2)}")
        a(f"global_load_ushort v{KP+6}, v{VKO1}, {sr(P_LOGDT,2)}")
        a(f"s_lshl_b32 {sr(S_T0)}, {sr(S_DB)}, 6")
        a(f"v_add_lshl_u32 v{T+13}, v{V_L}, {sr(S_T0)}, 1")
        a(f"global_load_ushort v{VDK}, v{T+13}, {sr(P_DSKIP,2)}")
        a(f"global_load_ushort v{VB2}, v{T+13}, {sr(P_B2,2)}")
        tag_small = a(f"global_load_ushort v{VB1}, v{VB1O}, {sr(P_B1,2)}")
        if "touch2m" in o["exp"] or "touch256k" in o["exp"]:
            if "touch2m" in o["exp"]:
                a(f"v_min_u32 v{T+14}, 7, v{V_L}")
                a(f"v_lshlrev_b32 v{T+14}, 21, v{T+14}")
            else:
                a(f"v_lshlrev_b32 v{T+14}, 18, v{V_L}")
            a(f"v_min_u32 v{T+14}, {WS_END - 64}, v{T+14}")
            a(f"buffer_load_dword v{VPD}, v{T+14}, {sr(SRD_WS,4)}, 0 offen")
            a(f"v_and_b32 v{T+14}, 1, v{V_L}")
            a(f"v_mul_u32_u24 v{T+14}, {2048*1024 - 64}, v{T+14}")
            a(f"buffer_load_dword v{VPD}, v{T+14}, {sr(SRD_OUT,4)}, 0 offen")
            a(f"global_load_dword v{VPD}, v{VZERO}, {sr(P_DSKIP,2)}")
            a(f"global_load_dword v{VPD}, v{VZERO}, {sr(P_B2,2)}")
            a(f"global_load_dword v{VPD}, v{VZERO}, {sr(P_DBG,2)}")
        late_setup_w2u()
        self.stamp("issued")
        ptags = {}
        pro = Fill()

        def w2u_dma():
            a(f"s_lshl_b32 {sr(S_T3)}, {sr(S_WAVE)}, 11")
            a(f"s_add_u32 m0, {sr(S_T3)}, {L_W2U}")
            a(f"buffer_load_dwordx4 v{VUS}, {sr(SRD_W2,4)}, {sr(S_L0)} offen lds")
        pro.q = [w2u_dma,
                 lambda: ptags.__setitem__("w2u", a(f"buffer_load_dwordx4 v{VUS}, {sr(SRD_W2,4)}, {sr(S_L1)} offen offset:1024 lds"))]

        def merged(groups):
            out = []
            for g in groups:
                out.append(lambda g=g: [op() for op in g[:-1]])
                out.append(g[-1])
            return out
        pro.q += merged(x_ops(1)) + merged(w_ops(2)) + merged(w_ops(3)) + merged(x_ops(2)) + merged(w_ops(4)) + merged(w_ops(5))
        a0 = a
        a = Paced(a0, pro, 10)
        for k in range(4):
            a(f"v_mov_b32 v{ONEB+k}, {BF16_ONE2:#x}")
            a(f"v_mov_b32 v{T+8+k}, 0")
        a(f"v_lshlrev_b32 v{T+2}, 4, v{V_L}")
        a(f"v_add_u32 v{T+12}, {L_GATEW}, v{T+2}")
        a(f"ds_write_b128 v{T+12}, {vr(ONEB,4)} offset:{L_ONES - L_GATEW}")
        a(f"ds_write_b128 v{T+12}, {vr(T+8,4)} offset:{L_ZEROS - L_GATEW}")
        a(f"v_lshrrev_b32 v{T}, 2, v{V_I}")
        a(f"v_and_b32 v{T+1}, 1, v{V_G}")
        a(f"v_lshl_or_b32 v{T+1}, v{T+1}, 2, v{T}")
        a(f"v_lshl_add_u32 v{T+2}, v{V_G}, 3, v{T}")
        a(f"v_lshlrev_b32 v{T+2}, 8, v{T+2}")
        a(f"v_and_b32 v{T+3}, 3, v{V_I}")
        a(f"v_lshl_add_u32 v{T+2}, v{T+3}, 3, v{T+2}")
        a(f"v_add_u32 v{T+2}, 0x10000, v{T+2}")
        for t in range(7):
            a(f"v_xor_b32 v{T+4}, {t}, v{T+1}")
            a(f"v_lshl_add_u32 v{VA+t}, v{T+4}, 5, v{T+2}")
        a0(f"s_lshl_b32 {sr(S_T0)}, {sr(S_WAVE)}, 1")
        for k in range(2):
            a0(f"v_xor_b32 v{T+4}, {sr(S_T0)}, v{T+1}")
            if k:
                a0(f"v_xor_b32 v{T+4}, 1, v{T+4}")
            a0(f"v_lshl_add_u32 v{VAC+k}, v{T+4}, 5, v{T+2}")
        for kk in range(2):
            a(f"v_or_b32 v{T}, {4*kk}, v{V_G}")
            a(f"v_lshrrev_b32 v{T+6}, 1, v{V_I}")
            a(f"v_xor_b32 v{T}, v{T}, v{T+6}")
            a(f"v_lshlrev_b32 v{T+6}, 7, v{V_I}")
            a(f"v_lshl_add_u32 v{T}, v{T}, 4, v{T+6}")
            a(f"v_add_u32 v{VXR+kk}, {sr(S_M0)}, v{T}")
        a(f"v_mov_b32 v{VGT}, {L_ZEROS}")
        a(f"v_mov_b32 v{T+4}, {L_ONES}")
        a(f"v_mov_b32 v{T+5}, {L_GATEW}")
        a(f"v_cmp_eq_u32 vcc, 0, v{T+3}")
        a(f"v_cndmask_b32 v{VGT}, v{VGT}, v{T+4}, vcc")
        a(f"v_cmp_eq_u32 vcc, 1, v{T+3}")
        a(f"v_cndmask_b32 v{VGT}, v{VGT}, v{T+5}, vcc")
        a(f"v_lshl_add_u32 v{VGT}, v{V_G}, 4, v{VGT}")
        for r in range(ACC, ACCC + 8):
            a(f"v_mov_b32 v{r}, 0")
        VW2U = T + 6
        a(f"v_lshrrev_b32 v{T}, 2, v{V_I}")
        a(f"v_lshl_add_u32 v{T}, v{V_G}, 2, v{T}")
        a(f"v_lshlrev_b32 v{T}, 6, v{T}")
        a(f"v_and_b32 v{T+1}, 3, v{V_I}")
        a(f"v_lshl_add_u32 v{T}, v{T+1}, 3, v{T}")
        a = a0
        a(f"s_lshl_b32 {sr(S_T0)}, {sr(S_WAVE)}, 11")
        a(f"s_add_u32 {sr(S_T0)}, {sr(S_T0)}, {L_W2U}")
        a(f"v_add_u32 v{VW2U}, {sr(S_T0)}, v{T}")
        self.stamp("setup")

        pro.drain()
        tag_w2u = ptags["w2u"]
        W2R = T + 16

        rd_tag = {}

        def rd_A(s, t, hi):
            rd_tag[("A", t)] = a(f"ds_read_b64_tr_b16 {vr(AF+4*t+2*hi,2)}, v{VA+t} offset:{(s % 8) * 8192 + 1024 * hi}")

        def rd_C(s, k, hi):
            rd_tag[("C", k)] = a(f"ds_read_b64_tr_b16 {vr(AC+4*k+2*hi,2)}, v{VAC+k} offset:{(s % 8) * 8192 + 1024 * hi}")

        def rd_G(s):
            rd_tag["G"] = a(f"ds_read_b128 {vr(GF,4)}, v{VGC} offset:{64*(s&1)}")

        def g_addr(s):
            return [lambda: a(f"s_add_u32 {sr(S_T3)}, {sr(S_ROT)}, {s//2}"),
                    lambda: a(f"s_and_b32 {sr(S_T3)}, {sr(S_T3)}, 7"),
                    lambda: a(f"s_lshl_b32 {sr(S_T3)}, {sr(S_T3)}, 7"),
                    lambda: a(f"v_add_u32 v{VGC}, {sr(S_T3)}, v{VGT}")]

        def rd_X(s, tt):
            a(f"ds_read_b128 {vr(X(s,tt),4)}, v{VXR+(s&1)} offset:{((s // 2) % 4) * 16384 + 2048*tt}")

        def ready_tag(s):
            tg = wtag[s]
            if (s & 1) == 0 and xtag[s // 2][1] > tg[1]:
                tg = xtag[s // 2]
            if s == 0 and tag_gate[1] > tg[1]:
                tg = tag_gate
            return tg

        for op in g_addr(0):
            op()
        a.wait_vm(ready_tag(0))
        a("s_waitcnt lgkmcnt(0)")
        a("s_barrier")
        self.stamp("stage0")
        rd_X(0, 0); rd_X(0, 1)
        for t in range(7):
            rd_A(0, t, 0); rd_A(0, t, 1)
        rd_G(0)
        for k in range(2):
            rd_C(0, k, 0); rd_C(0, k, 1)

        def ut_src():
            def setup():
                a(f"s_lshl_b32 {sr(S_T0)}, {sr(S_WAVE)}, 11")
                a(f"s_add_u32 m0, {sr(S_T0)}, {L_UTS}")
                a(f"s_lshl_b32 {sr(S_L0)}, {sr(S_CB)}, 6")
                a(f"s_add_u32 {sr(S_L0)}, {sr(S_L0)}, {sr(S_X0)}")
                a(f"s_add_u32 {sr(S_L1)}, {sr(S_L0)}, {16384-1024}")
            return [setup,
                    lambda: a(f"buffer_load_dwordx4 v{VUS}, {sr(SRD_U,4)}, {sr(S_L0)} offen lds"),
                    lambda: tags.__setitem__("uts", a(f"buffer_load_dwordx4 v{VUS}, {sr(SRD_U,4)}, {sr(S_L1)} offen offset:1024 lds"))]

        tags = {}
        self.w2tag = {}

        def w2_load(st, t):
            ops = []
            if t == 0:
                ops.append(lambda: (a(f"s_lshl_b32 {sr(S_L0)}, {sr(S_SIG[st])}, 2"), a(f"s_add_u32 {sr(S_L0)}, {sr(S_L0)}, {sr(S_W2B)}")))
            ops.append(lambda: self.w2tag.__setitem__((st, t), a(
                f"buffer_load_dwordx4 {ar((st*4+t)*4,4)}, v{VW2}, {sr(SRD_WS,4)}, {sr(S_L0)} offen offset:{t*1024} sc1")))
            return ops
        self.w2_load = w2_load

        bg = Fill()
        bg2 = Fill()

        def w2_unit_ops():
            ops = [lambda: a.wait_vm(tag_w2u)]
            for tl in range(2):
                ops.append(lambda tl=tl: a(f"ds_read_b64_tr_b16 {vr(W2R+4*tl,2)}, v{VW2U} offset:{32*tl}"))
                ops.append(lambda tl=tl: tags.__setitem__("w2r", a(f"ds_read_b64_tr_b16 {vr(W2R+4*tl+2,2)}, v{VW2U} offset:{32*tl+1024}")))
            ops.append(lambda: (a(f"s_cmp_lt_u32 {sr(S_WG)}, 224"), a(f"s_cselect_b32 {sr(S_T7)}, {sr(S_T7)}, 0x7ffff000")))
            ops += [None] * 6
            ops.append(lambda: a.wait_lg(tags["w2r"]))
            ops.append(lambda: a(f"buffer_store_dwordx4 {vr(W2R,4)}, v{VW2}, {sr(SRD_WS,4)}, {sr(S_T7)} offen sc1"))
            ops += [None] * 3
            ops.append(lambda: tags.__setitem__("w2st", a(f"buffer_store_dwordx4 {vr(W2R+4,4)}, v{VW2}, {sr(SRD_WS,4)}, {sr(S_T7)} offen offset:1024 sc1")))
            return ops

        def sigma_ops():
            ops = [lambda: a(f"s_and_b32 {sr(S_T1)}, {sr(S_TB)}, 3"),
                   lambda: a(f"s_lshl_b32 {sr(S_T1)}, {sr(S_T1)}, 2"),
                   lambda: a(f"s_lshl_b32 {sr(S_T2)}, {sr(S_DB)}, 1"),
                   lambda: a(f"s_add_u32 {sr(S_T1)}, {sr(S_T1)}, {sr(S_T2)}")]
            if not o.get("rot2", True):
                ops.append(lambda: a(f"s_mov_b32 {sr(S_T1)}, 0"))
            for _ in range(2):
                ops.append(lambda: (a(f"s_cmp_ge_u32 {sr(S_T1)}, 14"), a(f"s_cselect_b32 {sr(S_T2)}, 14, 0"), a(f"s_sub_u32 {sr(S_T1)}, {sr(S_T1)}, {sr(S_T2)}")))
            ops.append(lambda: a(f"s_lshl_b32 {sr(S_SIG[0])}, {sr(S_T1)}, 10"))
            for st in range(1, 14):
                ops.append(lambda st=st: (a(f"s_add_u32 {sr(S_T1)}, {sr(S_SIG[st-1])}, 1024"), a(f"s_cmp_eq_u32 {sr(S_T1)}, {14*1024}"),
                                          a(f"s_cselect_b32 {sr(S_SIG[st])}, 0, {sr(S_T1)}")))
            return ops

        for s in range(16):
            nxt = s + 1 < 16
            if o.get("fine") and (s in (0, 4, 8, 11, 12, 15) or "allk" in o["exp"]):
                self.stamp(f"k{s}")
            if s + 6 < 16:
                bg.q += paced(w_ops(s + 6))
            if s // 2 + 3 < 8:
                if (s & 1) == 0:
                    xh = x_ops(s // 2 + 3)
                bg.q += paced([xh[s & 1]])
            if s == 0:
                bg2.q += w2_unit_ops()
            if s == 5:
                assert not bg2.pending()
                a.wait_vm(tags["w2st"])
                a(f"v_readfirstlane_b32 {sr(S_NONCE)}, v{VNON}")
                a(f"s_mul_i32 {sr(S_NONCE)}, {sr(S_NONCE)}, 0x9e3779b1")
                a(f"s_add_u32 {sr(S_NONCE)}, {sr(S_NONCE)}, 0x7f4a7c15")
                bg2.q += sigma_ops()
            if s == 6:
                a(f"s_cmp_lt_u32 {sr(S_WG)}, 224")
                a("s_cbranch_scc0 L_noflagw")
                a(f"s_lshl_b32 {sr(S_T0)}, {sr(S_WG)}, 5")
                a(f"s_add_u32 {sr(S_T0)}, {sr(S_T0)}, {WS_FLAGW}")
                self.flag_store(S_T0, T + 60)
                a.vm_issued -= 1
                a.label("L_noflagw")
            if s == 7:
                bg2.q += [lambda: a(f"v_lshlrev_b32 v{VDK}, 16, v{VDK}"),
                          lambda: a(f"v_lshlrev_b32 v{VB2}, 16, v{VB2}"),
                          lambda: a(f"v_lshlrev_b32 v{T+13}, 2, v{V_L}"),
                          lambda: a(f"v_add_u32 v{T+13}, {L_DB}, v{T+13}"),
                          lambda: a(f"ds_write_b32 v{T+13}, v{VDK}"),
                          lambda: a(f"ds_write_b32 v{T+13}, v{VB2} offset:256"),
                          lambda: a(f"v_lshrrev_b32 v{T+13}, 3, v{V_L}"),
                          lambda: a(f"v_and_b32 v{VUE}, 7, v{V_L}"),
                          lambda: a(f"v_xor_b32 v{VUE}, v{VUE}, v{T+13}")]
            if s == 8:
                bg2.q += [lambda: a(f"v_lshlrev_b32 v{VUE}, 4, v{VUE}"),
                          lambda: a(f"v_lshl_add_u32 v{VUE}, v{T+13}, 10, v{VUE}")]
                bg2.q.append(lambda: tags.__setitem__("fw", self.flag_load(VFW, VFA)))
            if s == 10:
                uo = ut_src()
                bg.q += [uo[0], uo[1], None, None, None, uo[2], None, None]

                def ue_setup():
                    a(f"s_lshl_b32 {sr(S_T0)}, {sr(S_WAVE)}, 11")
                    a(f"s_add_u32 m0, {sr(S_T0)}, {L_UE}")
                    a(f"s_lshl_b32 {sr(S_L0)}, {sr(S_TB)}, 2")
                    a(f"s_add_u32 {sr(S_L0)}, {sr(S_L0)}, {sr(S_WAVE)}")
                    a(f"s_lshl_b32 {sr(S_L0)}, {sr(S_L0)}, 14")
                    a(f"s_lshl_b32 {sr(S_L1)}, {sr(S_DB)}, 7")
                    a(f"s_add_u32 {sr(S_L0)}, {sr(S_L0)}, {sr(S_L1)}")
                    a(f"s_add_u32 {sr(S_L1)}, {sr(S_L0)}, {8192-1024}")
                bg.q += [ue_setup,
                         lambda: a(f"buffer_load_dwordx4 v{VUE}, {sr(SRD_U,4)}, {sr(S_L0)} offen lds"), None, None, None,
                         lambda: a(f"buffer_load_dwordx4 v{VUE}, {sr(SRD_U,4)}, {sr(S_L1)} offen offset:1024 lds"), None, None]
            if s == 11:
                self.flag_check("W", VFW, VFA, tags["fw"])
                for st in range(0, 5):
                    for t in range(4):
                        ops = w2_load(st, t)
                        bg.add(ops)
                        bg.q += [None] * (5 - len(ops))
            reads = [[] for _ in range(20)]
            if nxt:
                reads[0] = [lambda: a.wait_vm(ready_tag(s + 1))]
                reads[1] = [lambda: a("s_barrier")]
                reads[2] = [lambda: rd_X(s + 1, 0)]
                reads[3] = [lambda: rd_X(s + 1, 1)]
                for t in range(6):
                    reads[4 + 2 * t] = [lambda t=t: rd_A(s + 1, t, 0)]
                    reads[5 + 2 * t] = [lambda t=t: rd_A(s + 1, t, 1)]
                reads[16] = [lambda: rd_A(s + 1, 6, 0)]
                reads[17] = [lambda: rd_A(s + 1, 6, 1), lambda: rd_G(s + 1)]
                reads[18] = [lambda: rd_C(s + 1, 0, 0), lambda: rd_C(s + 1, 0, 1)]
                reads[19] = [lambda: rd_C(s + 1, 1, 0), lambda: rd_C(s + 1, 1, 1)]
                if ((s + 1) & 1) == 0:
                    ga = g_addr(s + 1)
                    for k in range(4):
                        reads[6 + 2 * k].append(ga[k])
            pend = dict(rd_tag)
            mf = []
            for t in range(7):
                for tt in range(2):
                    w = pend[("A", min(t + 1, 6))] if (tt == 0 and t % 2 == 0) else None
                    mf.append((w, f"{MF} {vr(acc(t,tt),4)}, {vr(AF+4*t,4)}, {vr(X(s,tt),4)}, {vr(acc(t,tt),4)}"))
            for tt in range(2):
                mf.append((pend[("C", 1)] if tt == 0 else None, f"{MF} {vr(ACCS+4*tt,4)}, {vr(GF,4)}, {vr(X(s,tt),4)}, {vr(ACCS+4*tt,4)}"))
            for k in range(2):
                mf.append((None, f"{MF} {vr(ACCC+4*k,4)}, {vr(AC+4*k,4)}, {vr(ONEB,4)}, {vr(ACCC+4*k,4)}"))
            for tt in range(2):
                mf.append((None, f"{MF} {vr(ACCG+4*tt,4)}, {vr(X(s,tt),4)}, {vr(X(s,tt),4)}, {vr(ACCG+4*tt,4)}"))
            for j, (w, text) in enumerate(mf):
                if "nomfma" in o["exp"]:
                    if j < 2:
                        for r in reads[j]:
                            r()
                    a("s_nop 3")
                elif "noreads" in o["exp"]:
                    a(text)
                    if j < 2:
                        for r in reads[j]:
                            r()
                else:
                    if w is not None:
                        a.wait_lg(w)
                    a(text)
                    for r in reads[j]:
                        r()
                if j >= 2:
                    bg.step()
                    if j % 2 == 1:
                        bg2.step()
            if nxt:
                bg.step(2)
        self.stamp("gemm1")

        late = Fill()
        late.q = [(lambda op=op: op()) for op in bg.pending()]
        assert not bg2.pending()
        for st in range(5, 14):
            for t in range(4):
                late.q.append(lambda ops=self.w2_load(st, t): [op() for op in ops])
        self.late = late
        a0 = a
        a = Paced(a0, late, 13)
        a.wait_vm(tag_small)
        a(f"v_lshlrev_b32 v{VB1}, 16, v{VB1}")
        a(f"v_and_b32 v{T+3}, 127, v{V_TID}")
        a(f"v_lshlrev_b32 v{T+3}, 2, v{T+3}")
        a(f"v_add_u32 v{T+3}, {L_B1}, v{T+3}")
        a(f"ds_write_b32 v{T+3}, v{VB1}")
        CS, B1 = AF, AF + 28
        a(f"v_cmp_eq_u32 vcc, 0, v{V_I}")
        a(f"s_lshl_b32 {sr(S_T0)}, {sr(S_WAVE)}, 7")
        a(f"s_add_u32 {sr(S_T0)}, {sr(S_T0)}, {L_CS}")
        a(f"v_lshl_add_u32 v{T}, v{V_G}, 4, {sr(S_T0)}")
        a(f"v_and_b32 v{T+1}, 3, v{V_I}")
        a(f"v_cmp_eq_u32 {sr(S_M1,2)}, 1, v{T+1}")
        a(f"v_cmp_eq_u32 {sr(S_M2,2)}, 2, v{T+1}")
        a(f"v_cmp_eq_u32 {sr(S_M3,2)}, 3, v{T+1}")
        a(f"v_lshrrev_b32 v{T+2}, 2, v{V_I}")
        a(f"v_lshl_add_u32 v{T+2}, v{T+2}, 4, v{V_I}")
        a(f"v_lshlrev_b32 v{T+2}, 2, v{T+2}")
        a0(f"s_and_saveexec_b64 {sr(S_EX,2)}, vcc")
        a0(f"ds_write_b128 v{T}, {vr(ACCC,4)}")
        a0(f"ds_write_b128 v{T}, {vr(ACCC+4,4)} offset:64")
        a0(f"s_mov_b64 exec, {sr(S_EX,2)}")
        for tt in range(2):
            g0 = ACCG + 4 * tt
            a(f"v_cndmask_b32 v{T+3+tt}, v{g0}, v{g0+1}, {sr(S_M1,2)}")
            a(f"v_cndmask_b32 v{T+3+tt}, v{T+3+tt}, v{g0+2}, {sr(S_M2,2)}")
            a(f"v_cndmask_b32 v{T+3+tt}, v{T+3+tt}, v{g0+3}, {sr(S_M3,2)}")
        for tt in range(2):
            a(f"ds_bpermute_b32 v{T+5+tt}, v{T+2}, v{T+3+tt}")
        a("s_waitcnt lgkmcnt(0)")
        a("s_barrier")
        a(f"v_lshlrev_b32 v{T+1}, 4, v{V_G}")
        a(f"v_add_u32 v{T+1}, {L_CS}, v{T+1}")
        for t in range(7):
            a(f"ds_read_b128 {vr(CS+4*t,4)}, v{T+1} offset:{64*t}")
            a(f"ds_read_b128 {vr(B1+4*t,4)}, v{T+1} offset:{L_B1-L_CS+64*t}")
        inv = f2u(1.0 / 512)
        RS, NM, GV = T + 16, T + 18, T + 20
        M_, V_, W_, GW = T + 8, T + 10, T + 12, T + 14
        both = lambda fn: [a(fn(tt)) for tt in range(2)]
        both(lambda tt: f"v_mul_f32 v{M_+tt}, {inv:#x}, v{ACCS+4*tt}")
        both(lambda tt: f"v_mul_f32 v{V_+tt}, {inv:#x}, v{T+5+tt}")
        both(lambda tt: f"v_cvt_pk_bf16_f32 v{GW+tt}, v{ACCS+4*tt+1}, v{ACCS+4*tt+1}")
        both(lambda tt: f"v_fma_f32 v{V_+tt}, -v{M_+tt}, v{M_+tt}, v{V_+tt}")
        both(lambda tt: f"v_and_b32 v{GW+tt}, 0xffff0000, v{GW+tt}")
        both(lambda tt: f"v_max_f32 v{V_+tt}, 0, v{V_+tt}")
        both(lambda tt: f"v_mul_f32 v{GW+tt}, {f2u(-LOG2E):#x}, v{GW+tt}")
        both(lambda tt: f"v_cvt_pk_bf16_f32 v{W_+tt}, v{M_+tt}, v{V_+tt}")
        both(lambda tt: f"v_exp_f32 v{GW+tt}, v{GW+tt}")
        both(lambda tt: f"v_lshlrev_b32 v{M_+tt}, 16, v{W_+tt}")
        both(lambda tt: f"v_and_b32 v{V_+tt}, 0xffff0000, v{W_+tt}")
        both(lambda tt: f"v_add_f32 v{GW+tt}, 1.0, v{GW+tt}")
        both(lambda tt: f"v_add_f32 v{V_+tt}, {f2u(1e-5):#x}, v{V_+tt}")
        both(lambda tt: f"v_rcp_f32 v{GW+tt}, v{GW+tt}")
        both(lambda tt: f"v_cvt_pk_bf16_f32 v{W_+tt}, v{V_+tt}, v{V_+tt}")
        both(lambda tt: f"v_and_b32 v{V_+tt}, 0xffff0000, v{W_+tt}")
        both(lambda tt: f"v_cvt_pk_bf16_f32 v{GW+tt}, v{GW+tt}, v{GW+tt}")
        both(lambda tt: f"v_sqrt_f32 v{V_+tt}, v{V_+tt}")
        both(lambda tt: f"v_and_b32 v{GV+tt}, 0xffff0000, v{GW+tt}")
        both(lambda tt: f"v_cvt_pk_bf16_f32 v{W_+tt}, v{V_+tt}, v{V_+tt}")
        both(lambda tt: f"v_and_b32 v{V_+tt}, 0xffff0000, v{W_+tt}")
        both(lambda tt: f"v_rcp_f32 v{RS+tt}, v{V_+tt}")
        both(lambda tt: f"v_mul_f32 v{NM+tt}, -v{M_+tt}, v{RS+tt}")
        a = a0
        a(f"s_cmp_lg_u32 {sr(S_CB)}, 0")
        a("s_cbranch_scc1 L_nogate")
        a(f"s_lshl_b32 {sr(S_T0)}, {sr(S_RB)}, 2")
        a(f"s_add_u32 {sr(S_T0)}, {sr(S_T0)}, {sr(S_WAVE)}")
        a(f"s_lshl_b32 {sr(S_T0)}, {sr(S_T0)}, 7")
        a(f"s_add_u32 {sr(S_T0)}, {sr(S_T0)}, {WS_G}")
        a(f"v_lshlrev_b32 v{T+1}, 2, v{V_I}")
        a(f"s_mov_b64 {sr(S_EX,2)}, exec")
        a("s_mov_b64 exec, 0xffff")
        a(f"buffer_store_dword v{GV}, v{T+1}, {sr(SRD_WS,4)}, {sr(S_T0)} offen sc1", count=False)
        a(f"buffer_store_dword v{GV+1}, v{T+1}, {sr(SRD_WS,4)}, {sr(S_T0)} offen offset:64 sc1", count=False)
        a(f"s_mov_b64 exec, {sr(S_EX,2)}")
        a.label("L_nogate")

        c1 = -2.0 * LOG2E * math.sqrt(2.0 / math.pi)
        c2 = c1 * 0.044715
        VC1, VONE, VH, VTA = T + 22, T + 24, T + 26, T + 27
        a(f"v_mov_b32 v{VC1}, {f2u(c1):#x}")
        a(f"v_mov_b32 v{VC1+1}, {f2u(c1):#x}")
        a(f"v_mov_b32 v{VONE}, 1.0")
        a(f"v_mov_b32 v{VONE+1}, 1.0")
        a(f"s_mov_b32 {sr(S_C2)}, {f2u(c2):#x}")
        a(f"s_mov_b32 {sr(S_C2+1)}, {f2u(c2):#x}")
        a(f"s_lshl_b32 {sr(S_T0)}, {sr(S_RB)}, 3")
        a(f"s_lshl_b32 {sr(S_T1)}, {sr(S_WAVE)}, 1")
        a(f"s_add_u32 {sr(S_T0)}, {sr(S_T0)}, {sr(S_T1)}")
        a(f"s_lshl_b32 {sr(S_T0)}, {sr(S_T0)}, 3")
        a(f"s_lshr_b32 {sr(S_T1)}, {sr(S_CB)}, 1")
        a(f"s_add_u32 {sr(S_T0)}, {sr(S_T0)}, {sr(S_T1)}")
        a(f"s_mul_i32 {sr(S_T0)}, {sr(S_T0)}, 7168")
        a(f"s_add_u32 {sr(S_T0)}, {sr(S_T0)}, {WS_H}")
        a(f"s_and_b32 {sr(S_T1)}, {sr(S_CB)}, 1")
        a(f"s_mul_i32 {sr(S_T2)}, {sr(S_T1)}, 3072")
        a(f"s_add_u32 {sr(S_T4)}, {sr(S_T0)}, {sr(S_T2)}")
        a(f"s_add_u32 {sr(S_T5)}, {sr(S_T4)}, {8*7168}")
        a(f"s_lshl_b32 {sr(S_T2)}, {sr(S_T1)}, 3")
        a(f"s_add_u32 {sr(S_T6)}, {sr(S_T0)}, {sr(S_T2)}")
        a(f"s_add_u32 {sr(S_T6)}, {sr(S_T6)}, 6144")
        a(f"s_add_u32 {sr(S_T7)}, {sr(S_T6)}, {8*7168}")
        a(f"v_lshlrev_b32 v{VH}, 4, v{V_L}")
        fill = Fill()
        a("s_waitcnt lgkmcnt(0)")
        self.stamp("stats")
        W, OUTR = T + 28, T + 56
        nbuf = 0
        cnt = [0]

        def g(text):
            a(text)
            cnt[0] += 1
            if "gelu_w2" in o["exp"] and cnt[0] % 64 == 0:
                late.step()

        for tt in range(2):
            for P in range(4):
                tiles = (2 * P, 2 * P + 1) if P < 3 else (6,)
                ob = OUTR + 4 * (nbuf & 1)
                nbuf += 1
                jobs = [(t, h) for t in tiles for h in range(2)]
                xs = [W + 6 * j for j in range(len(jobs))]
                for j, (t, h) in enumerate(jobs):
                    g(f"v_pk_fma_f32 {vr(xs[j],2)}, {vr(CS+4*t+2*h,2)}, {vr(NM,2)}, {vr(B1+4*t+2*h,2)} op_sel:[0,{tt},0] op_sel_hi:[1,{tt},1]")
                for j, (t, h) in enumerate(jobs):
                    g(f"v_pk_fma_f32 {vr(xs[j],2)}, {vr(acc(t,tt)+2*h,2)}, {vr(RS,2)}, {vr(xs[j],2)} op_sel:[0,{tt},0] op_sel_hi:[1,{tt},1]")
                for x in xs:
                    g(f"v_pk_mul_f32 {vr(x+2,2)}, {vr(x,2)}, {vr(x,2)}")
                for x in xs:
                    g(f"v_pk_fma_f32 {vr(x+2,2)}, {vr(x+2,2)}, {sr(S_C2,2)}, {vr(VC1,2)}")
                for x in xs:
                    g(f"v_pk_mul_f32 {vr(x+2,2)}, {vr(x+2,2)}, {vr(x,2)}")
                for x in xs:
                    g(f"v_exp_f32 v{x+2}, v{x+2}")
                    g(f"v_exp_f32 v{x+3}, v{x+3}")
                for x in xs:
                    g(f"v_pk_add_f32 {vr(x+2,2)}, {vr(x+2,2)}, {vr(VONE,2)}")
                for x in xs:
                    g(f"v_rcp_f32 v{x+2}, v{x+2}")
                    g(f"v_rcp_f32 v{x+3}, v{x+3}")
                for x in xs:
                    g(f"v_pk_mul_f32 {vr(x,2)}, {vr(x,2)}, {vr(x+2,2)}")
                for j, x in enumerate(xs):
                    g(f"v_cvt_pk_bf16_f32 v{ob+j}, v{x}, v{x+1}")
                if P < 3:
                    a(f"buffer_store_dwordx4 {vr(ob,4)}, v{VH}, {sr(SRD_WS,4)}, {sr(S_T4 if tt == 0 else S_T5)} offen offset:{1024*P} sc1")
                else:
                    a(f"buffer_store_dwordx2 {vr(ob,2)}, v{VH}, {sr(SRD_WS,4)}, {sr(S_T6 if tt == 0 else S_T7)} offen sc1")
        self.stamp("gelu")

        a(f"s_lshl_b32 {sr(S_T0)}, {sr(S_WAVE)}, 11")
        a(f"s_add_u32 {sr(S_T0)}, {sr(S_T0)}, {L_UTS}")
        a(f"v_lshrrev_b32 v{T+1}, 2, v{V_I}")
        a(f"v_lshl_add_u32 v{T+1}, v{V_G}, 3, v{T+1}")
        a(f"v_lshlrev_b32 v{T+1}, 6, v{T+1}")
        a(f"v_and_b32 v{T+2}, 3, v{V_I}")
        a(f"v_lshl_add_u32 v{T+1}, v{T+2}, 3, v{T+1}")
        a(f"v_add_u32 v{T+1}, {sr(S_T0)}, v{T+1}")
        a.wait_vm(tags["uts"])
        for ct in range(2):
            a(f"ds_read_b64_tr_b16 {vr(T+4+4*ct,2)}, v{T+1} offset:{32*ct}")
            a(f"ds_read_b64_tr_b16 {vr(T+6+4*ct,2)}, v{T+1} offset:{32*ct+256}")
        a(f"v_lshlrev_b32 v{T+2}, 12, v{V_I}")
        a(f"v_lshl_add_u32 v{T+2}, v{V_G}, 4, v{T+2}")
        a(f"s_lshl_b32 {sr(S_T0)}, {sr(S_CB)}, 17")
        a(f"s_lshl_b32 {sr(S_T1)}, {sr(S_RB)}, 8")
        a(f"s_add_u32 {sr(S_T0)}, {sr(S_T0)}, {sr(S_T1)}")
        a(f"s_lshl_b32 {sr(S_T1)}, {sr(S_WAVE)}, 6")
        a(f"s_add_u32 {sr(S_T0)}, {sr(S_T0)}, {sr(S_T1)}")
        a(f"s_add_u32 {sr(S_T0)}, {sr(S_T0)}, {WS_UT}")
        a(f"s_add_u32 {sr(S_T1)}, {sr(S_T0)}, {16*4096}")
        a("s_waitcnt lgkmcnt(0)")
        a(f"buffer_store_dwordx4 {vr(T+4,4)}, v{T+2}, {sr(SRD_WS,4)}, {sr(S_T0)} offen sc1")
        self.tag_pubA = a(f"buffer_store_dwordx4 {vr(T+8,4)}, v{T+2}, {sr(SRD_WS,4)}, {sr(S_T1)} offen sc1")
        self.VW2 = VW2
        VTA = T + 14
        a(f"s_lshr_b32 {sr(S_T0)}, {sr(S_WAVE)}, 1")
        a(f"s_mul_i32 {sr(S_T0)}, {sr(S_T0)}, {32*TROW}")
        a(f"s_and_b32 {sr(S_T1)}, {sr(S_WAVE)}, 1")
        a(f"s_lshl_b32 {sr(S_T1)}, {sr(S_T1)}, 8")
        a(f"s_add_u32 {sr(S_T0)}, {sr(S_T0)}, {sr(S_T1)}")
        a(f"v_lshl_add_u32 v{VTA}, v{V_L}, 2, {sr(S_T0)}")
        self.k_tables(KP, T + 16, VTA, late if 'tab_w2' in o['exp'] else None, 26)
        self.stamp("tables2")

    def build(self):
        a, o = self.a, self.o
        self.prologue()
        self.phase_a()
        import gen2_bc
        gen2_bc.phase_b(self)
        gen2_bc.phase_c(self)
        a(f"s_or_b32 {sr(S_T0)}, {sr(S_WG)}, {sr(S_WAVE)}")
        a(f"s_cmp_lg_u32 {sr(S_T0)}, 0")
        a("s_cbranch_scc1 L_noadvance")
        a("v_mov_b32 v4, 0")
        a(f"v_mov_b32 v5, {sr(S_NONCE)}")
        a(f"buffer_store_dword v5, v4, {sr(SRD_WS,4)}, 0 offen sc1", count=False)
        a.label("L_noadvance")
        a("s_waitcnt vmcnt(0) lgkmcnt(0)")
        if o.get("clk"):
            a("s_memtime s[90:91]")
            a("s_memrealtime s[86:87]")
            a("s_waitcnt lgkmcnt(0)")
            a("s_sub_u32 s90, s90, s98")
            a("s_sub_u32 s86, s86, s100")
            a(f"s_and_b32 {sr(S_T0)}, {sr(S_WG)}, 0x3f")
            a(f"s_or_b32 {sr(S_T0)}, {sr(S_T0)}, {sr(S_WAVE)}")
            a(f"s_cmp_lg_u32 {sr(S_T0)}, 0")
            a("s_cbranch_scc1 L_noclk")
            a(f"s_lshr_b32 {sr(S_T0)}, {sr(S_WG)}, 6")
            a(f"s_lshl_b32 {sr(S_T0)}, {sr(S_T0)}, 4")
            a(f"s_add_u32 {sr(S_T0)}, {sr(S_T0)}, 8")
            a(f"v_mov_b32 v4, {sr(S_T0)}")
            a("v_mov_b32 v6, s90")
            a("v_mov_b32 v7, s86")
            a("v_mov_b32 v8, s100")
            a(f"global_store_dwordx3 v4, v[6:8], {sr(P_DBG,2)} offset:0", count=False)
            a("s_waitcnt vmcnt(0)")
            a.label("L_noclk")
        self.stamp("end")
        self.stamp_flush()
        a.label("L_end")
        a("s_endpgm")
        body = a.text()
        head = open("gated_mix__ssm_conv_s4__mixer_channel_mlp__prompt.s.ref").read().split("; Override launch")[0]
        head += f"; @launch grid=(256,1,1) block=(256,1,1) lds={LDS_TOTAL}\n"
        pf = (8 * a.icount // 64 + 127) // 128 + 1
        return head + f""".amdgcn_target "amdgcn-amd-amdhsa--gfx950"
.set PF_LINES, {pf}
.text
.globl {KNAME}
.p2align 8
.type {KNAME},@function
{KNAME}:
{body}.section .rodata,"a"
.p2align 6
.amdhsa_kernel {KNAME}
  .amdhsa_next_free_vgpr 512
  .amdhsa_next_free_sgpr 102
  .amdhsa_accum_offset 256
  .amdhsa_group_segment_fixed_size 0
  .amdhsa_kernarg_size 144
  .amdhsa_user_sgpr_count 2
  .amdhsa_user_sgpr_kernarg_segment_ptr 1
  .amdhsa_system_sgpr_workgroup_id_x 1
.end_amdhsa_kernel
"""


def main():
    ap = argparse.ArgumentParser()
    ap.add_argument("-o", default="k.s")
    ap.add_argument("--stamps", action="store_true")
    ap.add_argument("--exp", default="")
    ap.add_argument("--dump", default="")
    ap.add_argument("--clk", action="store_true")
    ap.add_argument("--norot", action="store_true")
    ap.add_argument("--rt", action="store_true")
    ap.add_argument("--rot2", action="store_true")
    ap.add_argument("--fine", action="store_true")
    args = ap.parse_args()
    opts = dict(stamps=args.stamps, exp=set(args.exp.split(",")), dump=args.dump, clk=args.clk, rot=not args.norot, rt=args.rt, fine=args.fine, rot2=args.rot2)
    g = Gen(opts)
    txt = g.build()
    open(args.o, "w").write(txt)
    if args.stamps:
        json.dump(opts["stamp_names"], open(args.o + ".stamps.json", "w"))
    print(f"wrote {args.o}: {g.a.icount} instructions, {g.a.nops_added} auto nops, {len(txt)} bytes")


if __name__ == "__main__":
    main()
```
